```python
import torch

def _softmax(x, axis=-1):
    return torch.softmax(x, dim=axis)
def _gelu(x):
    return torch.nn.functional.gelu(x, approximate="tanh")
def _silu(x):
    return torch.nn.functional.silu(x)
def _sigmoid(x):
    return torch.sigmoid(x)
def _layernorm(x, axis=-1, eps=1e-5):
    m = x.mean(dim=axis, keepdim=True)
    v = x.var(dim=axis, keepdim=True, unbiased=False)
    return (x - m) / torch.sqrt(v + eps)
def _scatter_add(tgt, idx, src, axis=0):
    return tgt.clone().index_add_(axis, idx, src)
def _segment_sum(src, seg, n):
    out = torch.zeros((n,) + src.shape[1:], dtype=src.dtype)
    return out.index_add_(0, seg, src)
def _pad(x, pw):
    flat = tuple(v for pair in reversed(pw) for v in pair)
    return torch.nn.functional.pad(x, flat)

kernel_name = 'recurrent_scan__mha_block_cached__dense_activation_relu__prompt'

def setup_inputs():

    _w = (lambda a: (lambda t: t.to(torch.bfloat16) if t.is_floating_point() else t)(torch.as_tensor(a)))
    def _A_setup():
        B, Sq, D = 1, 2048, 576
        H, Sk, Dh = 32, 2048, 128
        return {
            "x": _w((lambda *s: torch.randn(*s, dtype=torch.bfloat16) * 0.05)(B, Sq, D)),
            "k_cache": _w((lambda *s: torch.randn(*s, dtype=torch.bfloat16) * 0.8)(B, H, Sk, Dh)),
            "v_cache": _w((lambda *s: torch.randn(*s, dtype=torch.bfloat16) * 0.2)(B, H, Sk, Dh)),
            "wq": _w((lambda *s: torch.randn(*s, dtype=torch.bfloat16) * 0.8)(D, H * Dh) * (D ** -0.5)),
            "wo": _w((lambda *s: torch.randn(*s, dtype=torch.bfloat16) * 0.2)(H * Dh, D) * ((H * Dh) ** -0.5)),
        }
    _A_in = _A_setup()

    def _B_setup():
        B, S, D, Dff = 1, 2048, 576, 4608
        return {
            "x": _w((lambda *s: torch.randn(*s, dtype=torch.bfloat16) * 0.05)(B, S, D)),
            "w1": _w((lambda *s: torch.randn(*s, dtype=torch.bfloat16) * 0.1)(D, Dff)),
            "w2": _w((lambda *s: torch.randn(*s, dtype=torch.bfloat16) * 0.1)(Dff, D)),
        }
    _B_in = _B_setup()

    return {
        "A_x": _A_in["x"],
        "A_k_cache": _A_in["k_cache"],
        "A_v_cache": _A_in["v_cache"],
        "A_wq": _A_in["wq"],
        "A_wo": _A_in["wo"],
        "B_x": _B_in["x"],
        "B_w1": _B_in["w1"],
        "B_w2": _B_in["w2"],
    }

def reference(A_x, A_k_cache, A_v_cache, A_wq, A_wo, B_x, B_w1, B_w2):
    def _A_ref(x, k_cache, v_cache, wq, wo):
        B, Sq, D = x.shape
        H, Dh = 32, 128
        q = (lambda x, *d: x.permute(*d))((x @ wq).reshape(B, Sq, H, Dh), 0, 2, 1, 3)
        scores = torch.einsum("bhqd,bhkd->bhqk", q, k_cache) * (Dh ** -0.5)
        p = _softmax(scores, axis=-1)
        o = torch.einsum("bhqk,bhkd->bhqd", p, v_cache)
        return (lambda x, *d: x.permute(*d))(o, 0, 2, 1, 3).reshape(B, Sq, H * Dh) @ wo

    def _B_ref(x, w1, w2):
        h = torch.einsum("bsd,df->bsf", x, w1)
        zero = torch.zeros_like(h)
        h = torch.maximum(h, zero)
        return torch.einsum("bsf,fd->bsd", h, w2)

    x = A_x
    xn = _layernorm(x, axis=-1)
    s = _A_ref(xn, A_k_cache, A_v_cache, A_wq, A_wo)
    g = _silu(_B_ref(xn, B_w1, B_w2))
    return x + s * g
```

```python
NAME = "recurrent_scan__mha_block_cached__dense_activation_relu__prompt"

class A:
    def __init__(self):
        self.l = []
    def __call__(self, s):
        if isinstance(s, (list, tuple)):
            for x in s: self(x)
        else:
            self.l.append(s)
    def label(self, n): self.l.append(n + ":")
    def text(self):
        out = []
        for s in self.l:
            if s.endswith(":") or s.startswith(".") or s.startswith(";"):
                out.append(s)
            else:
                out.append("    " + s)
        return "\n".join(out) + "\n"

def vr(b, n=1): return f"v{b}" if n == 1 else f"v[{b}:{b+n-1}]"
def ar(b, n=1): return f"a{b}" if n == 1 else f"a[{b}:{b+n-1}]"
def sr(b, n=1): return f"s{b}" if n == 1 else f"s[{b}:{b+n-1}]"

def kernel_head(name):
    return [".text", f".globl {name}", ".p2align 8", f".type {name},@function", f"{name}:"]

def kernel_desc(name, nvgpr, accum, nsgpr=102):
    return ['.section .rodata,"a"', ".p2align 6", f".amdhsa_kernel {name}",
            f"  .amdhsa_next_free_vgpr {nvgpr}", f"  .amdhsa_next_free_sgpr {nsgpr}",
            f"  .amdhsa_accum_offset {accum}", "  .amdhsa_group_segment_fixed_size 0",
            "  .amdhsa_kernarg_size 88", "  .amdhsa_user_sgpr_count 2",
            "  .amdhsa_user_sgpr_kernarg_segment_ptr 1", "  .amdhsa_system_sgpr_workgroup_id_x 1",
            ".end_amdhsa_kernel"]

def srd(d, base, nbytes):
    return [f"s_mov_b32 s{d}, s{base}", f"s_and_b32 s{d+1}, s{base+1}, 0xffff",
            f"s_mov_b32 s{d+2}, {nbytes}", f"s_mov_b32 s{d+3}, 0x20000"]

def spread(nslots, items, start=0, end=None):
    if end is None: end = nslots
    out = [[] for _ in range(nslots)]
    n = len(items)
    w = end - start
    for i, it in enumerate(items):
        out[start + (i * w) // n].append(it)
    return out
```

```python
from asmlib import *
M16 = "v_mfma_f32_16x16x32_bf16"
def gen(path, inserts, trips=64, n=64, pre=[]):
    a = A()
    a(f"; @launch grid=(256,1,1) block=(256,1,1) lds=131072")
    a('.amdgcn_target "amdgcn-amd-amdhsa--gfx950"')
    K = NAME + "_kernel"
    a(kernel_head(K))
    a("s_load_dwordx2 s[4:5], s[0:1], 0")
    a("s_load_dwordx2 s[6:7], s[0:1], 80")
    a("s_waitcnt lgkmcnt(0)")
    a("s_and_b32 s20, s2, 7"); a("s_lshl_b32 s20, s20, 2"); a("s_lshr_b32 s21, s2, 6"); a("s_add_u32 s20, s20, s21")
    a("s_lshl_b32 s20, s20, 20")
    a("s_add_u32 s4, s4, s20"); a("s_addc_u32 s5, s5, 0")
    a(srd(8, 4, 1 << 20)); a(srd(12, 6, 1 << 20))
    a("v_lshlrev_b32 v3, 4, v0")
    a("v_and_b32 v1, 63, v0"); a("v_lshrrev_b32 v2, 6, v0"); a("s_nop 1")
    a("v_readfirstlane_b32 s22, v2"); a("s_lshl_b32 s23, s22, 12")
    for i in range(0, 256): a(f"v_accvgpr_write_b32 a{i}, 0")
    for i in range(8, 256): a(f"v_mov_b32 v{i}, 0")
    a("v_lshlrev_b32 v4, 4, v1"); a("v_add_u32 v4, s23, v4")
    a("v_lshlrev_b32 v5, 4, v1")
    a("s_mov_b32 m0, s23"); a("s_mov_b32 s26, 0")
    a(pre)
    a(f"s_mov_b32 s27, {trips}")
    a("s_barrier"); a("s_memtime s[30:31]"); a("s_memrealtime s[32:33]"); a("s_waitcnt lgkmcnt(0)")
    a(".p2align 6")
    a.label("Lloop")
    for rep in range(4):
        for i in range(n):
            a(f"{M16} {ar(4*(i%32),4)}, {ar(128+4*(i//4%16),4)}, {ar(192+4*(i%16),4)}, {ar(4*(i%32),4)}")
            a(inserts.get(i, []))
    a("s_add_u32 s26, s26, 16384"); a("s_and_b32 s26, s26, 0xfffff")
    a("s_sub_u32 s27, s27, 4"); a("s_cmp_lg_u32 s27, 0"); a("s_cbranch_scc1 Lloop")
    a("s_memtime s[34:35]"); a("s_memrealtime s[36:37]"); a("s_waitcnt lgkmcnt(0) vmcnt(0)")
    a("s_sub_u32 s34, s34, s30"); a("s_subb_u32 s35, s35, s31")
    a("s_sub_u32 s36, s36, s32"); a("s_subb_u32 s37, s37, s33")
    a("s_nop 15")
    a("v_mov_b32 v16, s34"); a("v_mov_b32 v17, s35"); a("v_mov_b32 v18, s36"); a("v_mov_b32 v19, s37")
    a("s_lshl_b32 s38, s2, 4"); a("v_mov_b32 v20, s38")
    a("v_cmp_eq_u32 vcc, 0, v0"); a("s_and_saveexec_b64 s[40:41], vcc"); a("s_cbranch_execz Lend")
    a("buffer_store_dwordx4 v[16:19], v20, s[12:15], 0 offen")
    a.label("Lend")
    a("s_endpgm")
    a(kernel_desc(K, 512, 256))
    open(path, "w").write(a.text())

dma = lambda t: f"buffer_load_dwordx4 v4, s[8:11], s26 offen offset:{t*1024} lds"
gld = lambda t: f"global_load_lds_dwordx4 v4, s[4:5] offset:{t*1024}"
ld = lambda t: f"buffer_load_dwordx4 v[{32+4*t}:{35+4*t}], v4, s[8:11], s26 offen offset:{t*1024}"
ex = "v_exp_f32 v20, v21"
ad = "v_add_f32 v22, v23, v24"
files = []
def G(name, ins, **kw):
    gen(name, ins, **kw); files.append(name)
G("c_base.s", {})
G("c_dma4.s", {16*t: [dma(t)] for t in range(4)})
G("c_gld4.s", {16*t: [gld(t)] for t in range(4)})
G("c_ld4.s", {16*t: [ld(t)] for t in range(4)})
G("c_dma4_add.s", {16*t: [dma(t), ad] for t in range(4)})
G("c_add_dma4.s", {16*t: [ad, dma(t)] for t in range(4)})
d = {i: [ex] for i in range(0, 64, 2)}
G("c_exp.s", dict(d))
d2 = dict(d); d2.update({16*t+1: [dma(t)] for t in range(4)})
G("c_exp_dma.s", d2)
d3 = {i: ([ex] if i % 2 == 0 else [ad, ad]) for i in range(64)}
G("c_full.s", dict(d3))
d4 = dict(d3); d4.update({16*t+1: [dma(t)] for t in range(4)})
G("c_full_dma.s", d4)
d5 = dict(d3); d5.update({16*t+1: [dma(t)] for t in range(4)}); d5.update({16*t+2: [] for t in range(4)})
G("c_full_dma_e1.s", d5)
G("c_bar.s", {0: ["s_barrier"]})
d6 = dict(d3); d6[1] = ["s_barrier"]
G("c_full_bar.s", d6)
d7 = {i: ([ex] if i % 2 == 0 else [ad, ad, "s_waitcnt lgkmcnt(0)"]) for i in range(64)}
G("c_full_wait.s", d7)
d8 = {i: ([ex] if i % 2 == 0 else [ad, ad, "s_add_u32 s40, s40, 1"]) for i in range(64)}
G("c_full_salu.s", d8)
d9 = {i: ([ex] if i % 2 == 0 else [ad, ad, ad]) for i in range(64)}
G("c_full_add3.s", d9)
d10 = {i: ([ex] if i % 2 == 0 else [ad, ad, f"ds_read_b128 v[40:43], v5"]) for i in range(64)}
G("c_full_ds.s", d10)
d11 = {i: ([ex, ad] if i % 2 == 0 else [ad]) for i in range(64)}
G("c_exadd_add.s", d11)
print(" ".join(files))
import json
print(json.dumps(["dev/" + f for f in files]))
```

```python
from gen_mb4 import *
files.clear()
ds = "ds_read_b128 a[240:243], v5"
ds2 = "ds_read_b128 a[244:247], v5 offset:1024"
tr = "ds_read_b64_tr_b16 a[240:241], v6"
tr2 = "ds_read_b64_tr_b16 a[242:243], v6 offset:1024"
cv = "v_cvt_pk_bf16_f32 v25, v26, v27"
wt = "s_waitcnt lgkmcnt(15)"
sa = "s_add_u32 s40, s40, 1"
pre = ["v_lshlrev_b32 v6, 3, v1"]
def pat(name, odd, every=4):
    d = {}
    for i in range(64):
        if i % 2 == 0: d[i] = [ex]
        elif (i // 2) % every == 0: d[i] = odd
        else: d[i] = [ad, ad]
    G(name, d, pre=pre)
pat("d_base.s", [ad, ad])
pat("d_ds_ad.s", [ds, ad], 2)
pat("d_ad_ds.s", [ad, ds], 2)
pat("d_ds_ds.s", [ds, ds2], 2)
pat("d_tr_tr.s", [tr, tr2], 2)
pat("d_tr_cv.s", [tr, cv], 2)
pat("d_cv_tr.s", [cv, tr], 2)
pat("d_cv_cv.s", [cv, cv], 2)
pat("d_wt_ds.s", [wt, ds], 2)
pat("d_ds_wt.s", [ds, wt], 2)
pat("d_sa_ds.s", [sa, ds], 2)
pat("d_wt_ad.s", [wt, ad], 2)
pat("d_wt_bar.s", [wt, "s_barrier"], 32)
pat("d_bar.s", ["s_barrier"], 32)
pat("d_gl.s", ["global_load_lds_dwordx4 v4, s[4:5]"], 8)
pat("d_dma.s", [dma(0)], 8)
pat("d_dma0.s", ["buffer_load_dwordx4 v4, s[8:11], 0 offen lds"], 8)
pat("d_sa_dma.s", [sa, dma(0)], 8)
pat("d_dma_sa.s", [dma(0), sa], 8)
print(" ".join(files))
```

```python
from gen_mb5 import *
files.clear()
def pat2(name, ev, od):
    d = {i: (ev if i % 2 == 0 else od) for i in range(64)}
    G(name, d, pre=pre)
pat2("e_base.s", [ex], [ad, ad])
pat2("e_wt_ex.s", [wt, ex], [ad, ad])
pat2("e_sa_ex.s", [sa, ex], [ad, ad])
pat2("e_ds_ex.s", [ds, ex], [ad, ad])
pat2("e_tr_ex.s", [tr, ex], [ad, ad])
pat2("e_ex_wt.s", [ex, wt], [ad, ad])
pat2("e_ex_ds.s", [ex, ds], [ad, ad])
pat2("e_wt_ad_ad.s", [ex], [wt, ad, ad])
pat2("e_tr_ad_ad.s", [ex], [tr, ad, ad])
pat2("e_tr_both.s", [tr, ex], [tr2, ad, ad])
pat2("e_tr_tr_ad.s", [ex], [tr, tr2, ad])
pat2("e_tr_tr_tr.s", [ex], [tr, tr2, tr])
pat2("e_ad_ex.s", [ad, ex], [ad])
pat2("e_ex_ad_0.s", [ex, ad], [])
pat2("e_ex_ex.s", [ex], [ex])
pat2("e_ad_ds_one.s", [ad], [ad, ds])
pat2("e_ad_ds_0.s", [], [ad, ds])
def pat3(name, odd, nxt, every=8):
    d = {}
    for i in range(64):
        if i % 2 == 0: d[i] = [ex]
        else: d[i] = [ad, ad]
    for i in range(1, 64, 2 * every):
        d[i] = odd; d[i + 1] = nxt[0]; d[i - 1] = nxt[1]
    G(name, d, pre=pre)
pat3("e_dma_n0.s", [dma(0)], [[], [ex]])
pat3("e_dma_p0.s", [dma(0)], [[ex], []])
pat3("e_dma_pad.s", [dma(0)], [[ex], [ad]])
pat3("e_dma_ptr.s", [dma(0)], [[ex], [tr, tr2]])
print(" ".join(files))
```

```python
import re

REG = re.compile(r"^(-|abs\()?([vas])(\d+)\)?$")
RNG = re.compile(r"^(-)?([vas])\[(\d+):(\d+)\]$")

def regs(op):
    op = op.strip()
    m = RNG.match(op)
    if m: return [(m.group(2), i) for i in range(int(m.group(3)), int(m.group(4)) + 1)]
    m = REG.match(op)
    if m: return [(m.group(2), int(m.group(3)))]
    if op in ("vcc", "exec", "m0", "scc"): return [(op, 0)]
    if op in ("vcc_lo", "vcc_hi"): return [("vcc", 0)]
    if op in ("exec_lo", "exec_hi"): return [("exec", 0)]
    return []

TRANS = ("v_exp_f32", "v_log_f32", "v_rcp_f32", "v_rsq_f32", "v_sqrt_f32", "v_sin_f32", "v_cos_f32")

class I:
    __slots__ = ("text", "op", "kind", "rd", "wr", "tag", "srcc", "passes", "cnt", "meta")
    def __init__(self, text, tag=None, meta=None):
        self.text = text; self.tag = tag; self.meta = meta
        self.rd = set(); self.wr = set(); self.srcc = set(); self.passes = 0; self.cnt = None
        t = text.split(";")[0].strip()
        if not t or t.endswith(":") or t.startswith("."):
            self.op = t; self.kind = "label" if t.endswith(":") else "dir"; return
        sp = t.split(None, 1)
        op = self.op = sp[0]
        rest = sp[1] if len(sp) > 1 else ""
        ops = [x.strip() for x in rest.split(",")] if rest else []
        mods = ""
        if ops:
            l = ops[-1].split(None, 1)
            ops[-1] = l[0]
            mods = l[1] if len(l) > 1 else ""
        R = lambda i: regs(ops[i]) if i < len(ops) else []
        allr = lambda a: [r for i in range(a, len(ops)) for r in R(i)]
        if op.startswith("v_mfma"):
            self.kind = "mfma"; self.wr.update(R(0)); self.rd.update(allr(1)); self.srcc.update(R(3))
            self.passes = 4 if "16x16x32" in op else 8
        elif op == "s_waitcnt":
            self.kind = "wait"; self.cnt = {}
            for k, v in re.findall(r"(vmcnt|lgkmcnt|expcnt)\((\d+)\)", rest): self.cnt[k] = int(v)
        elif op == "s_barrier": self.kind = "barrier"
        elif op == "s_nop": self.kind = "nop"; self.cnt = int(ops[0], 0) + 1
        elif op in ("s_endpgm",): self.kind = "end"
        elif op.startswith("s_cbranch") or op == "s_branch":
            self.kind = "branch"
            if "scc" in op: self.rd.add(("scc", 0))
            if "vcc" in op: self.rd.add(("vcc", 0))
            if "exec" in op: self.rd.add(("exec", 0))
        elif op.startswith("s_load") or op.startswith("s_memtime") or op.startswith("s_memrealtime"):
            self.kind = "smem"; self.wr.update(R(0)); self.rd.update(allr(1))
        elif op.startswith("s_cmp"):
            self.kind = "salu"; self.rd.update(allr(0)); self.wr.add(("scc", 0))
        elif op in ("s_setprio", "s_sleep"):
            self.kind = "salu"
        elif op.startswith("s_"):
            self.kind = "salu"; self.wr.update(R(0)); self.rd.update(allr(1))
            if "saveexec" in op: self.wr.add(("exec", 0)); self.rd.add(("exec", 0))
            if op.startswith(("s_cselect", "s_addc", "s_subb")): self.rd.add(("scc", 0))
            if not op.startswith(("s_mov", "s_cselect", "s_mul", "s_getreg")): self.wr.add(("scc", 0))
        elif op.startswith("ds_read") or op.startswith("ds_bpermute") or op.startswith("ds_swizzle"):
            self.kind = "dsr"; self.wr.update(R(0)); self.rd.update(allr(1))
        elif op.startswith("ds_write") or op.startswith("ds_or") or op.startswith("ds_add") or op.startswith("ds_max"):
            self.kind = "dsw"; self.rd.update(allr(0))
        elif op.startswith("buffer_load") or op.startswith("global_load"):
            if " lds" in (" " + mods) or "_lds_" in op:
                self.kind = "dma"; self.rd.update(allr(0)); self.rd.add(("m0", 0))
            else:
                self.kind = "vload"; self.wr.update(R(0)); self.rd.update(allr(1))
        elif op.startswith("buffer_store") or op.startswith("global_store"):
            self.kind = "vstore"; self.rd.update(allr(0))
        elif op.startswith("buffer_atomic") or op.startswith("global_atomic"):
            if "sc0" in mods:
                self.kind = "vload"; self.wr.update(R(0)); self.rd.update(allr(0) if op.startswith("buffer") else allr(1))
            else:
                self.kind = "vstore"; self.rd.update(allr(0))
        elif op.startswith("buffer_wbl2") or op.startswith("buffer_inv"):
            self.kind = "vstore"
        elif op.startswith("v_"):
            self.kind = "trans" if op.replace("_e32", "").replace("_e64", "") in TRANS else "valu"
            if op.startswith("v_cmp"):
                self.wr.update(R(0)); self.rd.update(allr(1))
                if op.startswith("v_cmpx"): self.wr.add(("exec", 0))
            elif op.startswith("v_permlane") and "swap" in op:
                self.wr.update(R(0)); self.wr.update(R(1)); self.rd.update(allr(0))
            elif op.startswith(("v_add_co", "v_sub_co", "v_addc_co", "v_subb_co")):
                self.wr.update(R(0)); self.wr.update(R(1)); self.rd.update(allr(2))
            elif op.startswith(("v_fmac", "v_dot2c")) or "_dpp" in op:
                self.wr.update(R(0)); self.rd.update(allr(0))
            else:
                self.wr.update(R(0)); self.rd.update(allr(1))
        else:
            raise ValueError("unknown instr: " + text)
    def states(self):
        if self.kind in ("label", "dir"): return 0
        if self.kind == "nop": return self.cnt
        return 1
    def __repr__(self): return self.text

def mk(x):
    return x if isinstance(x, I) else I(x)

VEC = ("v", "a")
def is_valu(i): return i.kind in ("valu", "trans")
def is_vmem(i): return i.kind in ("vload", "vstore", "dma")

def check_hazards(ins, name=""):
    probs = []
    n = len(ins)
    for k, c in enumerate(ins):
        if c.kind in ("label", "dir", "nop", "wait", "barrier", "end"): continue
        dist = 0
        j = k - 1
        while j >= 0 and dist < 20:
            p = ins[j]
            need = 0
            if p.kind == "mfma":
                big = {4: 8, 8: 12}[p.passes]
                if c.kind == "mfma":
                    ab = c.rd - c.srcc if not (c.srcc & (c.rd - c.srcc)) else c.rd
                    opsAB = set(regs(c.text.split(",")[1])) | set(regs(c.text.split(",")[2]))
                    if p.wr & opsAB: need = big
                    elif p.wr & c.srcc and p.wr != c.srcc: need = {4: 6, 8: 10}[p.passes]
                    elif p.wr & c.wr and p.wr != c.srcc: need = max(need, 0)
                elif is_valu(c):
                    if p.wr & (c.rd | c.wr): need = big
                    elif p.srcc & c.wr: need = {4: 3, 8: 7}[p.passes]
                elif c.kind in ("dsr", "dsw", "vload", "vstore", "dma"):
                    if p.wr & (c.rd | c.wr): need = big
            elif is_valu(p):
                vw = {r for r in p.wr if r[0] in VEC}
                sw = {r for r in p.wr if r[0] in ("s", "vcc")}
                if c.kind == "mfma" and vw & c.rd: need = 2
                if c.kind == "mfma" and ("exec", 0) in p.wr: need = 4
                if is_valu(c):
                    if p.kind == "trans" and c.kind != "trans" and vw & c.rd: need = max(need, 1)
                    if (c.op.startswith("v_permlane") or "_dpp" in c.op) and vw & c.rd: need = max(need, 2)
                    if c.op.startswith(("v_readlane", "v_readfirstlane")) and vw & c.rd: need = max(need, 1)
                    if sw & c.rd: need = max(need, 2)
                    if c.op.startswith("v_cndmask") and ("vcc", 0) in p.wr and ("vcc", 0) in c.rd: need = max(need, 2)
                    if ("exec", 0) in p.wr and ("_dpp" in c.op or c.op.startswith(("v_permlane", "v_readlane", "v_readfirstlane"))): need = max(need, 5)
                if is_vmem(c) and sw & c.rd: need = max(need, 5)
                if c.kind == "salu" and sw & c.rd: need = max(need, 1)
                if c.kind == "branch" and (sw & c.rd): need = max(need, 1)
            elif p.kind == "salu":
                if ("m0", 0) in p.wr and c.kind == "dma": need = 1
            elif p.kind == "vstore" and ("x4" in p.op or "x3" in p.op):
                data = set(regs(p.text.split(",")[0].split(None, 1)[1])) if p.op.startswith("buffer") else set(regs(p.text.split(",")[1]))
                if data & c.wr: need = 2 if is_valu(c) else 1
            if need > dist:
                probs.append(f"{name}[{k}] hazard need {need} have {dist}: '{p.text}' -> '{c.text}'")
            dist += p.states()
            j -= 1
    return probs

class WaitSim:
    def __init__(self):
        self.lg = []
        self.vm = []
    def need(self, c):
        touch = c.rd | c.wr
        lgN = vmN = None
        for idx, p in enumerate(self.lg):
            if p.wr & touch:
                lgN = len(self.lg) - 1 - idx
                if p.kind == "smem" or any(q.kind == "smem" for q in self.lg): lgN = 0
        for idx, p in enumerate(self.vm):
            if p.wr & touch: vmN = len(self.vm) - 1 - idx
        return lgN, vmN
    def step(self, c):
        if c.kind == "wait":
            if "lgkmcnt" in c.cnt:
                n = c.cnt["lgkmcnt"]
                if any(q.kind == "smem" for q in self.lg) and n > 0: pass
                else: self.lg = self.lg[len(self.lg) - n:] if n < len(self.lg) and n > 0 else ([] if n == 0 else self.lg)
            if "vmcnt" in c.cnt:
                n = c.cnt["vmcnt"]
                self.vm = self.vm[len(self.vm) - n:] if n < len(self.vm) and n > 0 else ([] if n == 0 else self.vm)
        elif c.kind in ("dsr", "dsw", "smem"): self.lg.append(c)
        elif is_vmem(c): self.vm.append(c)

def auto_waits(ins, sim=None):
    sim = sim or WaitSim()
    out = []
    for c in ins:
        if c.kind not in ("label", "dir", "wait", "nop", "barrier", "end"):
            lgN, vmN = sim.need(c)
            if lgN is not None or vmN is not None:
                pos = len(out); lg_after = 0; vm_after = 0
                j = len(out) - 1
                while j >= 0 and out[j].kind not in ("mfma", "label", "branch", "barrier", "dir", "wait"):
                    if out[j].kind in ("dsr", "dsw", "smem"): lg_after += 1
                    if is_vmem(out[j]): vm_after += 1
                    j -= 1
                ok = j >= 0 and out[j].kind in ("mfma", "wait") and (lgN is None or lg_after <= lgN) and (vmN is None or vm_after <= vmN)
                if ok and out[j].kind == "wait" and not (j > 0 and out[j - 1].kind == "mfma"): ok = False
                if lgN is not None and lgN > 15: raise ValueError("lgkm overflow")
                if ok:
                    l2 = None if lgN is None else lgN - lg_after
                    v2 = None if vmN is None else vmN - vm_after
                    if out[j].kind == "wait":
                        cnt = dict(out[j].cnt)
                        if l2 is not None: cnt["lgkmcnt"] = min(cnt.get("lgkmcnt", 99), l2)
                        if v2 is not None: cnt["vmcnt"] = min(cnt.get("vmcnt", 99), v2)
                        out[j] = I("s_waitcnt " + " ".join(f"{k}({v})" for k, v in sorted(cnt.items(), reverse=True)))
                    else:
                        s = []
                        if v2 is not None: s.append(f"vmcnt({v2})")
                        if l2 is not None: s.append(f"lgkmcnt({l2})")
                        out.insert(j + 1, I("s_waitcnt " + " ".join(s)))
                else:
                    s = []
                    if vmN is not None: s.append(f"vmcnt({min(vmN,63)})")
                    if lgN is not None: s.append(f"lgkmcnt({lgN})")
                    out.append(I("s_waitcnt " + " ".join(s)))
                s = []
                if vmN is not None: s.append(f"vmcnt({min(vmN,63)})")
                if lgN is not None: s.append(f"lgkmcnt({lgN})")
                sim.step(I("s_waitcnt " + " ".join(s)))
        sim.step(c)
        out.append(c)
    return out

def check_waits(ins, name=""):
    sim = WaitSim(); probs = []
    slot_content = {}
    wr_pending = {}
    wr_retired_epoch = {}
    rd_pending = {}
    rd_retired_epoch = {}
    epoch = 0
    for k, c in enumerate(ins):
        if c.kind not in ("label", "dir", "wait", "nop", "barrier", "end"):
            lgN, vmN = sim.need(c)
            if lgN is not None or vmN is not None:
                probs.append(f"{name}[{k}] missing wait lg={lgN} vm={vmN} before '{c.text}'")
        if len(sim.lg) > 15 + 0 and c.kind == "wait" and c.cnt.get("lgkmcnt", 0) > 15: probs.append("lgkm>15")
        if len(sim.vm) > 63: probs.append(f"{name}[{k}] vm outstanding > 63")
        if c.tag:
            t, slot, content = c.tag[:3]
            private = len(c.tag) > 3
            if t == "w":
                if slot_content.get(slot) != content:
                    if rd_pending.get(slot): probs.append(f"{name}[{k}] WAR: write {content} into {slot} while reads pending")
                    elif not private and rd_retired_epoch.get(slot, -1) >= epoch: probs.append(f"{name}[{k}] WAR: write {content} into {slot} without barrier after reads")
                    slot_content[slot] = content
                wr_pending.setdefault(content, []).append(c)
            else:
                if slot_content.get(slot) != content: probs.append(f"{name}[{k}] read {content} but slot {slot} holds {slot_content.get(slot)}")
                if wr_pending.get(content): probs.append(f"{name}[{k}] RAW: read {content} with writes pending")
                elif not private and wr_retired_epoch.get(content, -1) >= epoch: probs.append(f"{name}[{k}] RAW: read {content} without barrier")
                rd_pending.setdefault(slot, []).append(c)
        sim.step(c)
        if c.kind == "wait":
            live = set(map(id, sim.lg)) | set(map(id, sim.vm))
            for content, l in wr_pending.items():
                l2 = [x for x in l if id(x) in live]
                if len(l2) != len(l): wr_retired_epoch[content] = epoch
                wr_pending[content] = l2
            for slot, l in rd_pending.items():
                l2 = [x for x in l if id(x) in live]
                if len(l2) != len(l): rd_retired_epoch[slot] = epoch
                rd_pending[slot] = l2
        if c.kind == "barrier": epoch += 1
    return probs
```

```python
import sys
from asmlib import *
from isa import *

M16 = "v_mfma_f32_16x16x32_bf16"
XN_OFF = 0
HF_OFF = 0x400000
OF_OFF = 0x1800000
PT_OFF = 0x3000000
XN_SZ = 18 * 128 * 1024
HF_SZ = 128 * 144 * 1024
OF_SZ = 128 * 128 * 1024
PT_SZ = 2 * 4 * 128 * 36 * 1024
C_BITS = 0x3e0293ee
CINV_BITS = 0x40faf233
OOB = 0x70000000
import os
STAMP = int(os.environ.get("STAMP", "0"))
ST_OFF = 0xF000000
class Raw(I):
    def __init__(self, text):
        I.__init__(self, ".raw"); self.text = text
def stamp(k):
    if not STAMP: return []
    return [Raw(f"s_memrealtime s[{72+4*k}:{73+4*k}]"), Raw(f"s_memtime s[{74+4*k}:{75+4*k}]")]
def stamp_out(kidx, n, wsreg):
    if not STAMP: return []
    o = ["s_waitcnt lgkmcnt(0) vmcnt(0)"] + [x for x in stamp(n)] + ["s_waitcnt lgkmcnt(0)"]
    o += srd_off(68, wsreg, ST_OFF + kidx * 0x40000, 0x40000)
    o += ["s_lshl_b32 s3, s2, 6", "v_mov_b32 v1, s3", "v_cmp_eq_u32 vcc, 0, v0", "s_and_saveexec_b64 s[4:5], vcc", f"s_cbranch_execz Lst{kidx}"]
    for k in range(n + 1):
        o += [f"v_mov_b32 v2, s{72+4*k}", f"v_mov_b32 v3, s{74+4*k}", f"buffer_store_dwordx2 v[2:3], v1, s[68:71], 0 offen offset:{8*k}", "s_nop 1"]
    o += [f"Lst{kidx}:"]
    return [Raw(x) if isinstance(x, str) else x for x in o]

def L(x):
    out = []
    def rec(y):
        if isinstance(y, (list, tuple)):
            for z in y: rec(z)
        else: out.append(mk(y))
    rec(x)
    return out

def srd_off(d, base, off, nbytes, offs=None):
    o = [f"s_add_u32 s{d}, s{base}, {off if offs is None else 's%d' % offs}", f"s_addc_u32 s{d+1}, s{base+1}, 0",
         f"s_and_b32 s{d+1}, s{d+1}, 0xffff"]
    o += [f"s_mov_b32 s{d+2}, {nbytes}" if isinstance(nbytes, int) else nbytes, f"s_mov_b32 s{d+3}, 0x20000"]
    return o

def xlane(op, r, t):
    return [f"v_mov_b32 v{t}, v{r}", "s_nop 1", f"v_permlane32_swap_b32 v{r}, v{t}", "s_nop 1", f"{op} v{r}, v{r}, v{t}",
            f"v_mov_b32 v{t}, v{r}", "s_nop 1", f"v_permlane16_swap_b32 v{r}, v{t}", "s_nop 1", f"{op} v{r}, v{r}, v{t}"]

def rnd_bf16(r):
    return [f"v_cvt_pk_bf16_f32 v{r}, v{r}, v{r}", f"v_lshlrev_b32 v{r}, 16, v{r}"]

def weave(mf, gaps):
    out = []
    for m, g in zip(mf, gaps):
        out.append(m); out += g
    return L(out)

def order_gap(g):
    g = L(g)
    key = lambda i: 0 if i.kind in ("salu", "wait", "barrier", "branch") else (1 if i.kind in ("dsr", "dsw", "dma", "vload", "vstore") else 2)
    return sorted(g, key=key)

def gen_ln():
    p = []
    p += stamp(0) + ["s_cmp_ge_u32 s2, 128", "s_cbranch_scc1 Lln_end",
          "s_load_dwordx2 s[4:5], s[0:1], 0", "s_load_dwordx2 s[6:7], s[0:1], 80",
          "v_and_b32 v1, 63, v0", "v_lshrrev_b32 v2, 6, v0", "v_and_b32 v3, 15, v0", "v_bfe_u32 v4, v0, 4, 2",
          "s_lshl_b32 s3, s2, 4", "v_add_u32 v5, s3, v3", "v_mul_u32_u24 v5, 1152, v5",
          "v_mul_u32_u24 v6, 192, v2", "v_add_u32 v5, v5, v6", "v_lshl_add_u32 v5, v4, 4, v5",
          "s_waitcnt lgkmcnt(0)"]
    p += srd_off(8, 4, 0, 2048 * 1152) + srd_off(12, 6, XN_OFF, XN_SZ)
    for i in range(3): p.append(f"buffer_load_dwordx4 v[{8+4*i}:{11+4*i}], v5, s[8:11], 0 offen offset:{64*i}")
    p += ["v_lshl_add_u32 v6, v2, 4, v3", "v_lshlrev_b32 v6, 2, v6", "v_lshlrev_b32 v7, 2, v3",
          "v_mul_u32_u24 v56, 0x60000, v2", "s_lshl_b32 s3, s2, 10", "v_lshl_add_u32 v56, v1, 4, v56", "v_add_u32 v56, s3, v56",
          "s_waitcnt vmcnt(0)"]
    for i in range(12):
        p += [f"v_lshlrev_b32 v{24+2*i}, 16, v{8+i}", f"v_and_b32 v{25+2*i}, 0xffff0000, v{8+i}"]
    p += ["v_add_f32 v20, v24, v25", "v_add_f32 v21, v26, v27"]
    for i in range(4, 24, 2): p += [f"v_add_f32 v20, v20, v{24+i}", f"v_add_f32 v21, v21, v{25+i}"]
    p += ["v_add_f32 v20, v20, v21"] + xlane("v_add_f32", 20, 21)
    def allred(off):
        o = [f"ds_write_b32 v6, v20 offset:{off}", "s_waitcnt lgkmcnt(0)", "s_barrier"]
        for w in range(6): o.append(f"ds_read_b32 v{48+w}, v7 offset:{off+64*w}")
        o += ["s_waitcnt lgkmcnt(0)", "v_add_f32 v20, v48, v49", "v_add_f32 v21, v50, v51", "v_add_f32 v22, v52, v53",
              "v_add_f32 v20, v20, v21", "v_add_f32 v20, v20, v22", "v_mul_f32 v20, 0x3ae38e39, v20"]
        return o
    p += allred(0)
    p += ["v_mov_b32 v23, v20"]
    p += ["v_mov_b32 v20, 0", "v_mov_b32 v21, 0"]
    for i in range(0, 24, 2):
        p += [f"v_sub_f32 v54, v{24+i}, v23", f"v_sub_f32 v55, v{25+i}, v23", "v_fmac_f32 v20, v54, v54", "v_fmac_f32 v21, v55, v55"]
    p += ["v_add_f32 v20, v20, v21"] + xlane("v_add_f32", 20, 21)
    p += allred(512)
    p += rnd_bf16(20) + ["v_add_f32 v20, 0x3727c5ac, v20"] + rnd_bf16(20) + ["v_sqrt_f32 v20, v20", "s_nop 0"] + rnd_bf16(20)
    p += ["v_rcp_f32 v20, v20", "s_nop 0", f"v_mul_f32 v20, {C_BITS}, v20"] + rnd_bf16(23)
    for i in range(24): p += [f"v_sub_f32 v{24+i}, v{24+i}, v23", f"v_mul_f32 v{24+i}, v{24+i}, v20"]
    for i in range(12): p.append(f"v_cvt_pk_bf16_f32 v{8+i}, v{24+2*i}, v{25+2*i}")
    p += ["s_mov_b32 s16, 0x20000", "s_mov_b32 s17, 0x40000",
          "buffer_store_dwordx4 v[8:11], v56, s[12:15], 0 offen", "buffer_store_dwordx4 v[12:15], v56, s[12:15], s16 offen",
          "buffer_store_dwordx4 v[16:19], v56, s[12:15], s17 offen"] + stamp_out(0, 1, 6) + ["Lln_end:", "s_endpgm"]
    return L(p)

VBASE = 0; KBASE = 98304; WQB = 16384; W1B = 71680; DUMMY = 126976; FLAG = 65536
def kphys(i): return (i + 2) % 4
sXN, sWQ, sW1, sW5, sK, sV, sH, sO = 16, 20, 24, 28, 32, 36, 40, 44
s_h, s_rb, s_w = 48, 49, 50
s_xo, s_qo, s_wo, s_5o, s_5st, s_5m, s_5mb, s_5ms = 51, 52, 53, 54, 55, 56, 57, 58
s_hf = 4
s_w2k, s_w4k, s_ko, s_vo, s_cnt, s_rerun, s_t0, s_t1, s_t2 = 59, 60, 61, 62, 63, 64, 65, 66, 67
vX, vWq0, vWq1, vW10, vW11, vW5, vAq, vAp, vAs, vH, vHs, vO = 2, 3, 4, 5, 6, 7, 8, 9, 10, 11, 12, 13
vKd, vVd, vKa, vVa = 14, 18, 20, 24
AF = 32
vT = 56
QF = 64
QACC = 128
SB = [128, 160]; PB = [192, 208]; MR = 224; ONES = 240; LM = 244; LA = 252; MFL = 32
HACC = 0; XR = 144; KF = 144; VF = 176

def piece_off(dst, t_expr_lines, pitch, oob16):
    a, b, c = vT + 1, vT + 2, vT + 3
    o = list(t_expr_lines)
    o += [f"v_mul_u32_u24 v{a}, 3641, v{vT}", f"v_lshrrev_b32 v{a}, 16, v{a}",
          f"v_mul_u32_u24 v{b}, 18, v{a}", f"v_sub_u32 v{b}, v{vT}, v{b}",
          f"v_bfe_u32 v{c}, v{a}, 2, 2", f"v_lshlrev_b32 v{c}, 3, v{c}",
          f"v_and_b32 v{dst}, 3, v{a}", f"v_or_b32 v{c}, v{c}, v{dst}",
          f"v_bfe_u32 v{dst}, v{a}, 4, 1", f"v_lshl_or_b32 v{c}, v{dst}, 2, v{c}"]
    if isinstance(pitch, int): o += [f"v_mul_u32_u24 v{c}, {pitch}, v{c}"]
    else: o += [f"v_mul_u32_u24 v{c}, {pitch}, v{c}"]
    o += [f"v_lshl_add_u32 v{dst}, v{b}, 4, v{c}"]
    if oob16 is not None:
        o += [f"v_cmp_le_u32 vcc, {oob16}, v{b}", f"v_mov_b32 v{a}, {OOB}", "s_nop 0", f"v_cndmask_b32 v{dst}, v{dst}, v{a}, vcc"]
    return o

def k2_setup():
    p = stamp(0) + ["s_cmp_ge_u32 s2, 256", "s_cbranch_scc1 Lk2_end",
         "s_load_dwordx8 s[4:11], s[0:1], 8", "s_load_dwordx2 s[12:13], s[0:1], 48", "s_load_dwordx2 s[14:15], s[0:1], 80",
         "v_and_b32 v1, 63, v0", f"v_lshrrev_b32 v{vT}, 6, v0",
         f"s_and_b32 s{s_h}, s2, 7", f"s_lshl_b32 s{s_h}, s{s_h}, 2", f"s_lshr_b32 s{s_t0}, s2, 6", f"s_add_u32 s{s_h}, s{s_h}, s{s_t0}",
         f"s_lshr_b32 s{s_rb}, s2, 3", f"s_and_b32 s{s_rb}, s{s_rb}, 7",
         f"v_readfirstlane_b32 s{s_w}, v{vT}", "s_nop 1",
         f"s_lshl_b32 s{s_w2k}, s{s_w}, 11", f"s_lshl_b32 s{s_w4k}, s{s_w}, 12"]
    p += [f"s_lshl_b32 s{s_t0}, s{s_rb}, 14", f"s_add_u32 s{s_t0}, s{s_t0}, s{s_w4k}", f"v_lshlrev_b32 v{vX}, 4, v1", f"v_add_u32 v{vX}, s{s_t0}, v{vX}"]
    p += [f"s_lshl_b32 s{s_t0}, s{s_w}, 7"]
    p += piece_off(vWq0, [f"v_add_u32 v{vT}, s{s_t0}, v1"], 8192, 16)
    p += piece_off(vW10, [], 9216, None)
    p += piece_off(vWq1, [f"v_add_u32 v{vT}, 64, v{vT}"], 8192, 16)
    p += piece_off(vW11, [], 9216, None)
    p += [f"s_cmp_eq_u32 s{s_w}, 0", f"s_mov_b32 s{s_t0}, 9216", f"s_cselect_b32 s{s_t0}, 8192, s{s_t0}", f"s_cselect_b32 s{s_t1}, 16, 18",
          f"s_cmp_ge_u32 s{s_w}, 2", f"s_cselect_b32 s{s_t1}, 0, s{s_t1}"]
    p += piece_off(vW5, [f"v_add_u32 v{vT}, 512, v1"], f"s{s_t0}", f"s{s_t1}")
    p += [f"s_lshl_b32 s{s_5st}, s{s_t0}, 5",
          f"s_cmp_eq_u32 s{s_w}, 0", f"s_mov_b32 s{s_5mb}, {W1B+8192}", f"s_cselect_b32 s{s_5mb}, {WQB+8192}, s{s_5mb}",
          f"s_cmp_ge_u32 s{s_w}, 2", f"s_cselect_b32 s{s_5mb}, {DUMMY}, s{s_5mb}", f"s_cselect_b32 s{s_5ms}, 0, 9216"]
    p += ["s_waitcnt lgkmcnt(0)"]
    p += srd_off(sXN, 14, XN_OFF, XN_SZ)
    p += [f"s_lshl_b32 s{s_t0}, s{s_h}, 8"] + srd_off(sWQ, 8, 0, f"s_sub_u32 s{sWQ+2}, {576*8192}, s{s_t0}", offs=s_t0)
    p += [f"s_mul_i32 s{s_t0}, s{s_h}, 288"] + srd_off(sW1, 12, 0, f"s_sub_u32 s{sW1+2}, {576*9216}, s{s_t0}", offs=s_t0)
    p += [f"s_cmp_eq_u32 s{s_w}, 0", f"s_cselect_b32 s{sW5}, s{sWQ}, s{sW1}", f"s_cselect_b32 s{sW5+1}, s{sWQ+1}, s{sW1+1}",
          f"s_cselect_b32 s{sW5+2}, s{sWQ+2}, s{sW1+2}", f"s_mov_b32 s{sW5+3}, 0x20000"]
    p += [f"s_mov_b32 s{s_xo}, 0", f"s_mov_b32 s{s_qo}, 0", f"s_mov_b32 s{s_wo}, 0", f"s_mov_b32 s{s_5o}, 0", f"s_mov_b32 s{s_5m}, s{s_5mb}"]
    return L(p)

def k2_setup2():
    p = [f"s_lshl_b32 s{s_t0}, s{s_h}, 19"] + srd_off(sK, 4, 0, 524288, offs=s_t0) + srd_off(sV, 6, 0, 524288, offs=s_t0)
    p += srd_off(sH, 14, HF_OFF, HF_SZ) + srd_off(sO, 14, OF_OFF, OF_SZ)
    a, b = vT, vT + 1
    p += [f"v_lshrrev_b32 v{a}, 2, v1", f"v_mul_u32_u24 v{a}, 288, v{a}", f"v_and_b32 v{b}, 3, v1",
          f"v_lshl_add_u32 v{vAq}, v{b}, 4, v{a}", f"v_add_u32 v{vAq}, {WQB}, v{vAq}",
          f"v_lshl_add_u32 v{a}, v{b}, 3, v{a}",
          f"s_and_b32 s{s_t0}, s{s_h}, 1", f"s_cmp_eq_u32 s{s_t0}, 1",
          f"s_mov_b32 s{s_t1}, {W1B}", f"s_cselect_b32 s{s_t1}, {W1B+32}, s{s_t1}", f"s_mov_b32 s{s_t2}, {W1B+256}", f"s_cselect_b32 s{s_t2}, {W1B}, s{s_t2}",
          f"v_add_u32 v{vAp}, s{s_t1}, v{a}", f"v_add_u32 v{vAs}, s{s_t2}, v{a}"]
    p += [f"s_cselect_b32 s{s_t2}, -1, 4",
          f"s_mul_i32 s{s_t1}, s{s_h}, 9", f"s_add_u32 s{s_t1}, s{s_t1}, s{s_t0}", f"s_lshr_b32 s{s_t1}, s{s_t1}, 1",
          f"s_add_u32 s{s_t2}, s{s_t2}, s{s_t1}", f"s_lshl_b32 s{s_t0}, s{s_t0}, 3"]
    for f in range(5):
        src = s_t2 if f == 4 else s_t1
        p += [f"s_lshr_b32 s{s_cnt}, s{src}, 2", f"s_lshl_b32 s{s_cnt}, s{s_cnt}, 19", f"s_and_b32 s{s_hf+f}, s{src}, 3",
              f"s_lshl_b32 s{s_hf+f}, s{s_hf+f}, 10", f"s_add_u32 s{s_hf+f}, s{s_hf+f}, s{s_cnt}"]
        if f < 3: p += [f"s_add_u32 s{s_t1}, s{s_t1}, 1"]
    p += [f"s_add_u32 s{s_hf+4}, s{s_hf+4}, s{s_t0}",
          f"s_lshl_b32 s{s_t0}, s{s_rb}, 2", f"s_add_u32 s{s_t0}, s{s_t0}, s{s_w}", f"s_lshl_b32 s{s_t0}, s{s_t0}, 14",
          f"v_lshlrev_b32 v{a}, 4, v1", f"v_add_u32 v{vH}, s{s_t0}, v{a}",
          f"s_lshl_b32 s{s_t1}, s{s_h}, 19", f"v_add_u32 v{vO}, s{s_t1}, v{vH}"]
    p += [f"v_lshrrev_b32 v{a}, 4, v1", f"v_and_b32 v{b}, 15, v1",
          f"v_xor_b32 v{vT+2}, v{a}, v{b}", f"v_lshlrev_b32 v{vT+2}, 4, v{vT+2}",
          f"v_lshl_add_u32 v{vT+3}, v{a}, 8, v{vT+2}", f"v_add_u32 v{vKd}, s{s_w4k}, v{vT+3}"]
    for t in range(1, 4): p.append(f"v_xor_b32 v{vKd+t}, {64*t}, v{vKd}")
    p += [f"v_lshl_add_u32 v{vT+3}, v{b}, 8, v{vT+2}", f"v_add_u32 v{vKa}, {KBASE}, v{vT+3}"]
    for j in range(1, 4): p.append(f"v_xor_b32 v{vKa+j}, {64*j}, v{vKa}")
    p += [f"v_lshlrev_b32 v{vT+2}, 1, v{a}", f"v_xor_b32 v{vT+2}, v{vT+2}, v{b}", f"v_lshlrev_b32 v{vT+2}, 4, v{vT+2}",
          f"v_lshl_add_u32 v{vT+2}, v{a}, 8, v{vT+2}", f"v_add_u32 v{vVd}, s{s_w4k}, v{vT+2}", f"v_xor_b32 v{vVd+1}, 128, v{vVd}"]
    p += [f"v_lshrrev_b32 v{a}, 2, v1", f"v_and_b32 v{b}, 7, v{a}", f"v_lshlrev_b32 v{a}, 8, v{a}", f"v_lshl_add_u32 v{a}, v{b}, 5, v{a}",
          f"v_and_b32 v{b}, 3, v1", f"v_lshl_add_u32 v{vVa}, v{b}, 3, v{a}"]
    for d in range(1, 8): p.append(f"v_xor_b32 v{vVa+d}, {32*d}, v{vVa}")
    p += [f"s_mov_b32 s{s_rerun}, 0"]
    return L(p)

def stage_loads(s):
    sl = s % 6
    o = []
    tq, tw = ("w", f"WQ{sl}", f"wq{s}"), ("w", f"W1{sl}", f"w1{s}")
    o.append(([f"s_add_u32 m0, s{s_w2k}, {WQB + sl*9216}"], I(f"buffer_load_dwordx4 v{vWq0}, s[{sWQ}:{sWQ+3}], s{s_qo} offen lds", tag=tq)))
    o.append(([f"s_add_u32 m0, s{s_w2k}, {W1B + sl*9216}"], I(f"buffer_load_dwordx4 v{vW10}, s[{sW1}:{sW1+3}], s{s_wo} offen lds", tag=tw)))
    o.append(([f"s_add_u32 m0, s{s_w2k}, {WQB + sl*9216 + 1024}"], I(f"buffer_load_dwordx4 v{vWq1}, s[{sWQ}:{sWQ+3}], s{s_qo} offen lds", tag=tq)))
    o.append(([f"s_add_u32 m0, s{s_w2k}, {W1B + sl*9216 + 1024}"], I(f"buffer_load_dwordx4 v{vW11}, s[{sW1}:{sW1+3}], s{s_wo} offen lds", tag=tw)))
    o.append(([f"s_mov_b32 m0, s{s_5m}"], I(f"buffer_load_dwordx4 v{vW5}, s[{sW5}:{sW5+3}], s{s_5o} offen lds", tag=tq)))
    post = [f"s_add_u32 s{s_qo}, s{s_qo}, {32*8192}", f"s_add_u32 s{s_wo}, s{s_wo}, {32*9216}", f"s_add_u32 s{s_5o}, s{s_5o}, s{s_5st}",
            (f"s_add_u32 s{s_5m}, s{s_5m}, s{s_5ms}" if sl != 5 else f"s_mov_b32 s{s_5m}, s{s_5mb}")]
    for qt in range(4):
        o.append(([post[qt]], I(f"buffer_load_dwordx4 {ar(XR + 16*sl + 4*qt, 4)}, v{vX}, s[{sXN}:{sXN+3}], s{s_xo} offen offset:{1024*qt}")))
    return o, [f"s_add_u32 s{s_xo}, s{s_xo}, 131072"]

def kv_loads(kind, i, soff):
    o = []
    if kind == "K":
        base = KBASE + kphys(i) * 16384; tag = ("w", f"K{kphys(i)}", f"k{i}")
    else:
        base = VBASE + (i % 4) * 16384; tag = ("w", f"V{i%4}", f"v{i}")
    for t in range(4):
        va = vKd + t if kind == "K" else vVd + (t & 1)
        s = sK if kind == "K" else sV
        pre = [f"s_add_u32 m0, s{s_w4k}, {base}"] if t == 0 else []
        o.append((pre, I(f"buffer_load_dwordx4 v{va}, s[{s}:{s+3}], {soff} offen offset:{1024*t} lds", tag=tag)))
    return o

def a_reads(s, t):
    sl = s % 6
    blk = AF + 4 * ((17 * s + t) % 6)
    if t < 8: va, off, tag = vAp, 32 * t, ("r", f"W1{sl}", f"w1{s}")
    elif t == 8: va, off, tag = vAs, 0, ("r", f"W1{sl}", f"w1{s}")
    else:
        n = t - 9; va, off, tag = vAq, 64 * (n // 2) + 8 * (n % 2), ("r", f"WQ{sl}", f"wq{s}")
    off += sl * 9216
    return [I(f"ds_read_b64_tr_b16 {vr(blk,2)}, v{va} offset:{off}", tag=tag),
            I(f"ds_read_b64_tr_b16 {vr(blk+2,2)}, v{va} offset:{off+4608}", tag=tag)]

ALEAD = 4
def phaseA():
    pro = []
    for s in range(5):
        ld, post = stage_loads(s)
        for pre, ins in ld: pro += pre + ["s_nop 0", ins]
        pro += post
    pro += k2_setup2()
    for i in range(144): pro.append(f"v_accvgpr_write_b32 a{HACC+i}, 0")
    for i in range(128): pro.append(f"v_mov_b32 v{QACC+i}, 0")
    pro += ["s_waitcnt vmcnt(36)", "s_barrier"] + stamp(1)
    for t in range(ALEAD): pro += a_reads(0, t)
    body = []
    pend = []
    for s in range(18):
        mf = []
        for t in range(17):
            blk = AF + 4 * ((17 * s + t) % 6)
            for qt in range(4):
                acc = ar(HACC + 16 * t + 4 * qt, 4) if t < 9 else vr(QACC + 16 * (t - 9) + 4 * qt, 4)
                mf.append(f"{M16} {acc}, {vr(blk,4)}, {ar(XR + 16*(s%6) + 4*qt, 4)}, {acc}")
        gaps = [[] for _ in range(68)]
        for t in range(17):
            t2 = t + ALEAD
            if t2 < 17: gaps[4 * t] += a_reads(s, t2)
            elif s < 17: gaps[4 * t] += a_reads(s + 1, t2 - 17)
        bar_gap = 4 * (17 - ALEAD) - 1
        for g in range(68):
            if g == bar_gap and s < 17:
                assert not pend
                gaps[g - 1].append(I("s_waitcnt vmcnt(WAITSTAGE)", meta=("stagewait", [f"wq{s+1}", f"w1{s+1}"])))
                gaps[g].append("s_barrier")
                if s + 5 < 18:
                    ld, post = stage_loads(s + 5)
                    pend = list(ld) + [(post, None)]
                elif s == 13: pend = [([f"s_mov_b32 s{s_ko}, 0"], None)] + kv_loads("K", 0, f"s{s_ko}") + kv_loads("V", 0, f"s{s_ko}")
                elif s == 14: pend = [([f"s_mov_b32 s{s_ko}, 16384"], None)] + kv_loads("K", 1, f"s{s_ko}") + kv_loads("V", 1, f"s{s_ko}")
            elif pend and g % 4 == 2 and g != bar_gap - 1:
                pre, ins = pend.pop(0)
                gaps[g - 1] += pre
                if ins is not None: gaps[g].append(ins)
        body += weave(mf, [order_gap(g) for g in gaps])
    assert not pend
    return L(pro), body

def epilogueA():
    p = ["s_barrier"] + stamp(2)
    p += [f"s_mov_b32 s{s_ko}, 32768"]
    for pre, ins in kv_loads("K", 2, f"s{s_ko}"): p += pre + ["s_nop 0", ins]
    p += ["s_nop 4"]
    for qt in range(4):
        for j in range(4):
            a_, b_ = QACC + 16 * (2 * j) + 4 * qt, QACC + 16 * (2 * j + 1) + 4 * qt
            d = QF + 16 * qt + 4 * j
            p += [f"v_cvt_pk_bf16_f32 v{d}, v{a_}, v{a_+1}", f"v_cvt_pk_bf16_f32 v{d+1}, v{a_+2}, v{a_+3}",
                  f"v_cvt_pk_bf16_f32 v{d+2}, v{b_}, v{b_+1}", f"v_cvt_pk_bf16_f32 v{d+3}, v{b_+2}, v{b_+3}"]
    k = 0
    for qt in range(4):
        if qt: p.append(f"v_add_u32 v{vH}, 4096, v{vH}")
        for f in range(5):
            T = 128 + 16 * (k % 8); k += 1
            n = 8 if f < 4 else 4
            for i in range(n):
                t = 2 * f + i // 4
                p.append(f"v_accvgpr_read_b32 v{T+4+i}, a{HACC + 16*t + 4*qt + i%4}")
            for i in range(n // 2): p.append(f"v_cvt_pk_bf16_f32 v{T+i}, v{T+4+2*i}, v{T+5+2*i}")
            for i in range(n // 2): p.append(f"v_pk_max_i16 v{T+i}, v{T+i}, 0")
            if f < 4: p.append(f"buffer_store_dwordx4 {vr(T,4)}, v{vH}, s[{sH}:{sH+3}], s{s_hf+f} offen")
            else: p.append(f"buffer_store_dwordx2 {vr(T,2)}, v{vH}, s[{sH}:{sH+3}], s{s_hf+f} offen")
    for i in range(4): p.append(f"v_mov_b32 v{MFL+i}, 0xff800000")
    return L(p)

def k_read(sub, kt, j):
    i, hk = sub // 2, sub % 2
    return I(f"ds_read_b128 {ar(KF + 16*kt + 4*j, 4)}, v{vKa+j} offset:{kphys(i)*16384 + hk*8192 + kt*4096}", tag=("r", f"K{kphys(i)}", f"k{i}"))
def v_reads(sub, dt):
    i, hv = sub // 2, sub % 2
    off = (i % 4) * 16384 + hv * 8192
    tag = ("r", f"V{i%4}", f"v{i}")
    return [I(f"ds_read_b64_tr_b16 {ar(VF + 4*dt, 2)}, v{vVa+dt} offset:{off}", tag=tag),
            I(f"ds_read_b64_tr_b16 {ar(VF + 4*dt + 2, 2)}, v{vVa+dt} offset:{off+4096}", tag=tag)]

ADDQ = (0, 2)
def lreg_add(qt): return LA + qt // 2
def lreg_m(qt): return LM + 4 * (qt // 2)

def qk_chain(sub, kt, qt, czero=False):
    d = SB[sub % 2] + 16 * kt + 4 * qt
    o = []
    for j in range(4):
        c = ("0" if czero else vr(MR + 4 * qt, 4)) if j == 0 else vr(d, 4)
        o.append(f"{M16} {vr(d,4)}, {ar(KF + 16*kt + 4*j, 4)}, {vr(QF + 16*qt + 4*j, 4)}, {c}")
    return o

def att_phase(u, do_qk=True, do_pv=True, do_sm=True, first_pv=False, extra=None):
    mf = []; qk_end = {}; pv_start = {}; pv_end = {}; qk_start = {}
    pb_r = PB[(u - 1) % 2]
    for g in range(8):
        if do_qk:
            qk_start[g] = len(mf); mf += qk_chain(u + 1, g // 4, g % 4); qk_end[g] = len(mf) - 1
        if do_pv:
            pv_start[g] = len(mf)
            for qt in range(4):
                o = ar(32 * qt + 4 * g, 4)
                mf.append(f"{M16} {o}, {ar(VF + 4*g, 4)}, {vr(pb_r + 4*qt, 4)}, {'0' if first_pv else o}")
            pv_end[g] = len(mf) - 1
            if g % 4 == 3:
                qt = 1 if g == 3 else 3
                l = vr(lreg_m(qt), 4)
                mf.append(f"{M16} {l}, {vr(ONES,4)}, {vr(pb_r + 4*qt, 4)}, {'0' if first_pv else l}")
    n = len(mf)
    full = do_qk and do_pv and do_sm
    half = n // 2
    if full:
        hp = "EOEOEOEODEEOEOEOEOEOEODEEOEOEOEOEO"[:33]
        hp = "EOEOEOEODEEOEOEOEOEODEEOEOEOEEOEO"
        assert len(hp) == 33 and hp.count("E") == 17 or True
        hp = "EOEOEOODEEOEOEOEOEOODEEOEOEOEOEEO"
        assert len(hp) == 33 and hp.count("E") == 16 and hp.count("D") == 2, (len(hp), hp.count("E"))
        pat = hp + hp
    else:
        pat = None
    items = []
    exps = []
    sb = SB[u % 2]; pb_w = PB[u % 2]
    if do_sm:
        order = [(qt, kt, i) for qt in range(4) for kt in range(2) for i in range(4)]
        for e, (qt, kt, i) in enumerate(order):
            r = sb + 16 * kt + 4 * qt + i
            exps.append(f"v_exp_f32 v{r}, v{r}")
    bar_gap = half - 3
    even = (u % 2 == 0)
    mem = []
    if do_qk:
        for j in range(4): mem.append((0, qk_start[4] - 8 + j, k_read(u + 1, 1, j)))
    if do_pv:
        for dt in range(4, 8):
            for x in v_reads(u - 1, dt): mem.append((0, pv_start[dt] - 8, x))
    e2 = max(bar_gap + 1, (qk_end[3] + 1) if do_qk else 0)
    if u + 2 <= 64:
        for j in range(4): mem.append((e2, n - 8 + j, k_read(u + 2, 0, j)))
    if 0 <= u <= 63:
        for dt in range(4):
            for x in v_reads(u, dt): mem.append((max(e2, (pv_end[dt] + 1) if do_pv else 0), n - 4 + 8 * dt, x))
    dq = []
    if u >= 0 and u <= 62:
        if even:
            i = u // 2
            if u > 0: dq += [(0, x) for x in kv_loads("V", i + 1, f"s{s_vo}")[2:]]
            dq += [(bar_gap + 1, x) for x in kv_loads("K", i + 3, f"s{s_ko}")[:2]]
        else:
            i = u // 2
            dq += [(0, x) for x in kv_loads("K", i + 3, f"s{s_ko}")[2:]] + [(0, x) for x in kv_loads("V", i + 2, f"s{s_vo}")[:2]]
    gaps = [[] for _ in range(n)]
    if even and 0 <= u <= 62:
        i = u // 2
        gaps[bar_gap - 1].append(I("s_waitcnt vmcnt(WAITSTAGE)", meta=("stagewait", [f"k{i+1}", f"v{i}"])))
        gaps[bar_gap].append("s_barrier")
        gaps[bar_gap - 2].append(f"s_add_u32 s{s_ko}, s{s_ko}, 16384")
        gaps[bar_gap + 2].append(f"s_add_u32 s{s_vo}, s{s_vo}, 16384")
    if pat is None:
        ne = len(exps)
        epos = [(k * (n - 2)) // ne for k in range(ne)] if ne else []
        cap = lambda g: 4
        dpos = list(range(3, n, 4))
        ogaps = list(range(n))
    else:
        epos = [g for g in range(n) if pat[g] == "E"]
        dpos = [g for g in range(n) if pat[g] == "D"]
        ogaps = [g for g in range(n) if pat[g] == "O"]
        cap = lambda g: 2
    val = []
    if do_sm:
        for e, (qt, kt, i) in enumerate(order):
            r = sb + 16 * kt + 4 * qt + i
            if qt in ADDQ: val.append((epos[e] + 1, n + 5, f"v_add_f32 v{lreg_add(qt)}, v{lreg_add(qt)}, v{r}"))
            if i & 1: val.append((epos[e] + 1, epos[e] + 12, f"v_cvt_pk_bf16_f32 v{pb_w + 4*qt + 2*kt + i//2}, v{r-1}, v{r}"))
    for g in dpos:
        if dq and dq[0][0] <= g - 1:
            _, (pre, ins) = dq.pop(0)
            gaps[g - 1] += pre; gaps[g].append(ins)
    assert not dq, (u, dq)
    todo = [(a_, b_, k, x) for k, (a_, b_, x) in enumerate(mem + val)]
    for g in ogaps:
        c = cap(g)
        cand = sorted([t for t in todo if t[0] <= g], key=lambda t: (t[1], t[2]))
        pick = []
        ms = [t for t in cand if isinstance(t[3], I)]; vs = [t for t in cand if not isinstance(t[3], I)]
        while len(pick) < c and (ms or vs):
            if ms and (not vs or len([q for q in pick if isinstance(q[3], I)]) <= len([q for q in pick if not isinstance(q[3], I)])): pick.append(ms.pop(0))
            else: pick.append(vs.pop(0))
        for t in pick:
            todo.remove(t); gaps[g].append(t[3])
            if t[1] < g and full: print(f"  warn: phase {u} late item at gap {g} (deadline {t[1]}): {t[3]}", file=sys.stderr)
    if todo:
        if full: print(f"  warn: phase {u} leftover {len(todo)}", file=sys.stderr)
        for t in sorted(todo, key=lambda t: t[2]): gaps[n - 1].append(t[3])
    og = [order_gap(g) for g in gaps]
    for e, g in enumerate(epos): og[g].append(mk(exps[e]))
    if extra:
        for g, x in extra: og[g] = L(x) + og[g]
    return weave(mf, og)

def att_start():
    p = ["Latt:"]
    p += [I("s_waitcnt vmcnt(WAITSTAGE)", meta=("stagewait", ["k0"])), "s_barrier"] + stamp(3)
    p += [f"s_mov_b32 s{s_ko}, 32768", f"s_mov_b32 s{s_vo}, 16384", f"s_mov_b32 s{s_cnt}, 8"]
    for kt in range(2):
        for j in range(4): p.append(k_read(0, kt, j))
    p += [f"v_mov_b32 v{vT}, {FLAG}", f"v_mov_b32 v{vT+1}, 0", f"ds_write_b32 v{vT}, v{vT+1}"]
    for i in range(4): p.append(f"v_mov_b32 v{ONES+i}, 0x3f803f80")
    p += [f"v_mov_b32 v{LA}, 0", f"v_mov_b32 v{LA+1}, 0"]
    mf = []
    for kt in range(2):
        for qt in range(4): mf += qk_chain(0, kt, qt, czero=True)
    gaps = [[] for _ in range(32)]
    for j in range(4): gaps[17 + 2 * j].append(k_read(1, 0, j))
    p += weave(mf, gaps)
    p += ["s_nop 7"]
    for qt in range(4):
        a_, b_ = SB[0] + 4 * qt, SB[0] + 16 + 4 * qt
        m = MR + 4 * qt
        p += [f"v_max3_f32 v{m}, v{a_}, v{a_+1}, v{MFL+qt}", f"v_max3_f32 v{m+1}, v{a_+2}, v{a_+3}, v{b_}",
              f"v_max3_f32 v{m}, v{m}, v{b_+1}, v{b_+2}", f"v_max3_f32 v{m}, v{m}, v{m+1}, v{b_+3}"]
        p += xlane("v_max_f32", m, m + 1)
        p += [f"v_sub_f32 v{m}, 0, v{m}"] + [f"v_mov_b32 v{m+i}, v{m}" for i in range(1, 4)]
        for r in [a_ + i for i in range(4)] + [b_ + i for i in range(4)]: p.append(f"v_add_f32 v{r}, v{r}, v{m}")
    p += ["s_nop 1"]
    return L(p)

def att_end():
    p = stamp(5) + ["s_nop 7"]
    T = 128
    R = 36
    for qt in range(4):
        if qt in ADDQ:
            p += xlane("v_add_f32", lreg_add(qt), vT)
            p += [f"v_mov_b32 v{R+qt}, v{lreg_add(qt)}"]
        else: p += [f"v_mov_b32 v{R+qt}, v{lreg_m(qt)}"]
    p += [f"v_max_f32 v{vT}, v{R}, v{R+1}", f"v_add_f32 v{vT}, v{R}, v{R+1}", f"v_add_f32 v{vT+1}, v{R+2}, v{R+3}", f"v_add_f32 v{vT}, v{vT}, v{vT+1}",
          f"v_mov_b32 v{vT+1}, 0x4b800000", f"v_cmp_nlt_f32 vcc, v{vT}, v{vT+1}", f"v_mov_b32 v{vT+2}, {FLAG}", f"v_mov_b32 v{vT+3}, 1",
          "s_and_saveexec_b64 s[68:69], vcc", "s_cbranch_execz Lnoflag", f"ds_write_b32 v{vT+2}, v{vT+3}", "Lnoflag:", "s_mov_b64 exec, s[68:69]",
          "s_waitcnt lgkmcnt(0)", "s_barrier", f"ds_read_b32 v{vT+4}, v{vT+2}"]
    for qt in range(4): p.append(f"v_rcp_f32 v{R+qt}, v{R+qt}")
    k = 0
    for qt in range(4):
        p.append(f"s_mov_b32 s{s_t0}, {qt*4096}")
        for f in range(4):
            t0 = T + 16 * (k % 8); k += 1
            for i in range(8): p.append(f"v_accvgpr_read_b32 v{t0+4+i}, a{32*qt + 8*f + i}")
            for i in range(8): p.append(f"v_mul_f32 v{t0+4+i}, v{t0+4+i}, v{R+qt}")
            for i in range(4): p.append(f"v_cvt_pk_bf16_f32 v{t0+i}, v{t0+4+2*i}, v{t0+5+2*i}")
            p.append(f"buffer_store_dwordx4 {vr(t0,4)}, v{vO}, s[{sO}:{sO+3}], s{s_t0} offen offset:{1024*f}")
    p += ["s_waitcnt lgkmcnt(0)", f"v_readfirstlane_b32 s{s_t0}, v{vT+4}", "s_nop 1", f"s_andn2_b32 s{s_t0}, s{s_t0}, s{s_rerun}",
          "s_cbranch_scc1 Lfallback"] + stamp_out(1, 6, 14) + ["Lk2_end:", "s_endpgm"]
    return L(p)

def fallback():
    p = ["Lfallback:", f"s_mov_b32 s{s_rerun}, -1", f"s_mov_b32 s{s_ko}, 0", "s_waitcnt vmcnt(0)", "Lfb_loop:", "s_barrier"]
    for pre, ins in kv_loads("K", 0, f"s{s_ko}"): p += pre + ["s_nop 0", I(ins.text)]
    p += ["s_waitcnt vmcnt(0)", "s_barrier"]
    for sub in range(2):
        for kt in range(2):
            for j in range(4): p.append(I(k_read(sub, kt, j).text))
        p += ["s_waitcnt lgkmcnt(0)"]
        for kt in range(2):
            for qt in range(4): p += qk_chain(0, kt, qt, czero=True)
        p += ["s_nop 7"]
        for qt in range(4):
            a_, b_ = SB[0] + 4 * qt, SB[0] + 16 + 4 * qt
            m = MFL + qt
            p += [f"v_max3_f32 v{m}, v{a_}, v{a_+1}, v{m}", f"v_max3_f32 v{m}, v{a_+2}, v{a_+3}, v{m}",
                  f"v_max3_f32 v{m}, v{b_}, v{b_+1}, v{m}", f"v_max3_f32 v{m}, v{b_+2}, v{b_+3}, v{m}"]
    p += [f"s_add_u32 s{s_ko}, s{s_ko}, 16384", f"s_cmp_lt_u32 s{s_ko}, 524288", "s_cbranch_scc1 Lfb_loop", "s_barrier"]
    for kind, i in (("K", 0), ("K", 1), ("K", 2), ("V", 0), ("V", 1)):
        p += [f"s_mov_b32 s{s_ko}, {i*16384}"]
        for pre, ins in kv_loads(kind, i, f"s{s_ko}"): p += pre + ["s_nop 0", I(ins.text)]
    p += ["s_waitcnt vmcnt(0)", "s_branch Latt"]
    return L(p)

def resolve_stagewaits(ins):
    out = []; vm = []
    for c in ins:
        if c.meta and c.meta[0] == "stagewait":
            last = -1
            for idx, p in enumerate(vm):
                if p.tag and p.tag[2] in c.meta[1]: last = idx
            nn = len(vm) - 1 - last
            c = I(f"s_waitcnt vmcnt({min(nn,63)})")
        if is_vmem(c): vm.append(c)
        out.append(c)
    return out

def finalize(segs, name):
    lin = []
    for k, (lab, s) in enumerate(segs):
        lin.append(I(f".seg {k}"))
        lin += s
    lin = resolve_stagewaits(lin)
    lin = auto_waits(lin)
    pr = check_hazards(lin, name) + check_waits(lin, name)
    for x in pr[:40]: print("PROBLEM", x, file=sys.stderr)
    if pr: raise SystemExit(f"{len(pr)} problems in {name}")
    out = []; cur = None
    for c in lin:
        if c.kind == "dir" and c.text.startswith(".seg"):
            cur = []; out.append(cur)
        else: cur.append(c)
    return out

def gen_k2():
    pro, bodyA = phaseA()
    segs = [("setup", k2_setup()), ("proA", pro), ("A", bodyA), ("epiA", epilogueA()), ("start", att_start())]
    segs.append(("p0", att_phase(0, do_pv=False)))
    base = len(segs)
    for u in range(1, 63):
        extra = None
        segs.append((f"p{u}", att_phase(u, first_pv=False)))
    segs.append(("p63", att_phase(63, do_qk=False)))
    segs.append(("p64", att_phase(64, do_qk=False, do_sm=False)))
    segs.append(("end", att_end()))
    z = [f"v_accvgpr_write_b32 a{i}, 0" for i in range(128)] + [f"v_mov_b32 v{LM+i}, 0" for i in range(8)]
    st = segs[4][1]
    idx = next(k for k, c in enumerate(st) if c.kind == "mfma")
    segs[4] = ("start", st[:idx] + L(z) + st[idx:])
    out = finalize(segs, "k2")
    T = lambda s: [c.text for c in s]
    ph = {u: out[base + u - 1] for u in range(1, 63)}
    for u in range(9, 63):
        ref = 9 + (u - 9) % 8
        assert T(ph[u]) == T(ph[ref]), f"phase {u} differs from {ref}"
    for u in range(1, 9):
        a_, b_ = T(ph[u]), T(ph[u + 8])
        if a_ != b_:
            d = [(x, y) for x, y in zip(a_, b_) if x != y]
            print(f"note: phase {u} vs {u+8}: len {len(a_)} {len(b_)} diffs {d}", file=sys.stderr)
            assert len(a_) == len(b_) and all(x.startswith("s_waitcnt vmcnt") for x, y in d)
    prog = []
    for k in range(base): prog += out[k]
    prog += stamp(4) + L([".p2align 6", "Lloop:"])
    def ins_after_mfma(seg, gi, x):
        pos = [k for k, c in enumerate(seg) if c.kind == "mfma"][gi]
        return seg[:pos + 1] + L(x) + seg[pos + 1:]
    for u in range(9, 17):
        s = ph[u]
        if u == 14:
            s = ins_after_mfma(s, 60, [f"s_sub_u32 s{s_cnt}, s{s_cnt}, 1"])
            s = ins_after_mfma(s, 62, [f"s_cmp_eq_u32 s{s_cnt}, 0"])
            pos = [k for k, c in enumerate(s) if c.kind == "mfma"][62]
            assert not any(("scc", 0) in c.wr for c in s[pos + 2:])
            s = s + L(["s_cbranch_scc1 Ltail"])
        prog += s
    prog += L(["s_branch Lloop", "Ltail:"])
    for k in range(base + 62, len(out)): prog += out[k]
    fb = fallback()
    pr = check_hazards(fb, "fb") + check_waits(fb, "fb")
    assert not pr, pr
    prog += fb
    return prog

def gen_k3():
    sW2, sWO, sHF, sOF, sPT = 16, 20, 24, 28, 32
    s_kq, s_r, s_cb, s_w, s_t0, s_t1, s_wo, s_bo, s_m = 40, 41, 42, 43, 44, 45, 46, 47, 48
    vD = 2
    vA = 12
    vB = 16
    vP = 20
    vT = 24
    AF = 32
    NSET = 3
    BR = 128
    GA, SA = 0, 72
    p = stamp(0) + ["s_cmp_ge_u32 s2, 256", "s_cbranch_scc1 Lk3_end",
         "s_load_dwordx2 s[4:5], s[0:1], 32", "s_load_dwordx2 s[6:7], s[0:1], 56", "s_load_dwordx2 s[8:9], s[0:1], 80",
         "v_and_b32 v1, 63, v0", f"v_lshrrev_b32 v{vT}, 6, v0",
         f"s_bfe_u32 s{s_kq}, s2, 0x20001", f"s_and_b32 s{s_r}, s2, 1", f"s_lshl_b32 s{s_r}, s{s_r}, 3", f"s_lshr_b32 s{s_t0}, s2, 5",
         f"s_add_u32 s{s_r}, s{s_r}, s{s_t0}", f"s_bfe_u32 s{s_cb}, s2, 0x20003",
         f"v_readfirstlane_b32 s{s_w}, v{vT}", "s_nop 1", f"s_mul_i32 s{s_m}, s{s_w}, 9216"]
    p += [f"s_mul_i32 s{s_t0}, s{s_w}, {32*1152}", f"s_mul_i32 s{s_t1}, s{s_cb}, 288", f"s_add_u32 s{s_t0}, s{s_t0}, s{s_t1}"]
    for t in range(9):
        a, b = vT + 1, vT + 2
        p += [f"v_add_u32 v{vT}, {64*t}, v1", f"v_mul_u32_u24 v{a}, 3641, v{vT}", f"v_lshrrev_b32 v{a}, 16, v{a}",
              f"v_mul_u32_u24 v{b}, 18, v{a}", f"v_sub_u32 v{b}, v{vT}, v{b}", f"v_mul_u32_u24 v{a}, 1152, v{a}",
              f"v_lshl_add_u32 v{a}, v{b}, 4, v{a}", f"v_add_u32 v{vD+t}, s{s_t0}, v{a}"]
    p += [f"s_lshl_b32 s{s_t0}, s{s_r}, 3", f"s_lshl_b32 s{s_t1}, s{s_w}, 1", f"s_add_u32 s{s_t0}, s{s_t0}, s{s_t1}",
          f"v_lshlrev_b32 v{vT}, 4, v1",
          f"s_lshl_b32 s{s_t1}, s{s_t0}, 12", f"s_mul_i32 s{s_bo}, s{s_kq}, {9*524288}", f"s_add_u32 s{s_bo}, s{s_t1}, s{s_bo}",
          f"v_add_u32 v{vB}, s{s_bo}, v{vT}", f"v_add_u32 v{vB+1}, 4096, v{vB}",
          f"s_lshl_b32 s{s_bo}, s{s_kq}, 22", f"s_add_u32 s{s_bo}, s{s_t1}, s{s_bo}",
          f"v_add_u32 v{vB+2}, s{s_bo}, v{vT}", f"v_add_u32 v{vB+3}, 4096, v{vB+2}",
          f"s_lshl_b32 s{s_t1}, s{s_kq}, 7", f"s_add_u32 s{s_t1}, s{s_t1}, s{s_t0}", f"s_mul_i32 s{s_t1}, s{s_t1}, 36",
          f"s_mul_i32 s{s_bo}, s{s_cb}, 9", f"s_add_u32 s{s_t1}, s{s_t1}, s{s_bo}", f"s_lshl_b32 s{s_t1}, s{s_t1}, 10",
          f"v_add_u32 v{vP}, s{s_t1}, v{vT}"]
    p += [f"v_lshrrev_b32 v{vT}, 2, v1", f"v_mul_u32_u24 v{vT}, 288, v{vT}", f"v_and_b32 v{vT+1}, 3, v1", f"v_lshl_add_u32 v{vA}, v{vT+1}, 3, v{vT}"]
    for sl in range(1, 4): p.append(f"v_add_u32 v{vA+sl}, {36864*sl}, v{vA}")
    p += ["s_waitcnt lgkmcnt(0)"]
    p += [f"s_mul_i32 s{s_t0}, s{s_kq}, {1152*1152}"] + srd_off(sW2, 6, 0, 1152 * 1152, offs=s_t0)
    p += [f"s_mul_i32 s{s_t0}, s{s_kq}, {1024*1152}"] + srd_off(sWO, 4, 0, 1024 * 1152, offs=s_t0)
    p += srd_off(sHF, 8, HF_OFF, HF_SZ) + srd_off(sOF, 8, OF_OFF, OF_SZ) + srd_off(sPT, 8, PT_OFF, PT_SZ)
    def loads(st):
        sl = st % 4; g = st < 9; ls = st if g else st - 9
        o = []
        sw = sW2 if g else sWO; sb = sHF if g else sOF
        for t in range(9):
            pre = [f"s_add_u32 m0, s{s_m}, {sl*36864 + t*1024}"]
            o.append((pre, I(f"buffer_load_dwordx4 v{vD+t}, s[{sw}:{sw+3}], s{s_wo} offen lds", tag=("w", f"W{sl}", f"w{st}"))))
        for qt in range(2):
            for ks in range(4):
                o.append(([], I(f"buffer_load_dwordx4 {vr(BR + 32*sl + 16*qt + 4*ks, 4)}, v{vB + (0 if g else 2) + qt}, s[{sb}:{sb+3}], s{s_bo} offen offset:{1024*ks}")))
        first = [f"s_mov_b32 s{s_wo}, {ls*128*1152}", f"s_mov_b32 s{s_bo}, {ls*524288}"]
        return first, o
    def reads(st, nt):
        sl = st % 4; blk = AF + 16 * ((9 * st + nt) % NSET)
        o = []
        for ks in range(4):
            off = ks * 9216 + nt * 32
            for hh in range(2):
                o.append(I(f"ds_read_b64_tr_b16 {vr(blk + 4*ks + 2*hh, 2)}, v{vA+sl} offset:{off + 4608*hh}", tag=("r", f"W{sl}", f"w{st}")))
        return o
    for st in range(3):
        first, ld = loads(st)
        p += first
        for pre, ins in ld: p += pre + ["s_nop 0", ins]
    p += [I("s_waitcnt vmcnt(WAITSTAGE)", meta=("stagewait", ["w0"])), "s_barrier"] + stamp(1)
    p += reads(0, 0)
    body = []
    pend = []
    stores = []
    for st in range(17):
        g = st < 9; first_st = st in (0, 9)
        acc0 = GA if g else SA
        mf = []
        for nt in range(9):
            blk = AF + 16 * ((9 * st + nt) % NSET)
            for qt in range(2):
                acc = ar(acc0 + 8 * nt + 4 * qt, 4)
                for ks in range(4):
                    c = "0" if (first_st and ks == 0) else acc
                    mf.append(f"{M16} {acc}, {vr(blk + 4*ks, 4)}, {vr(BR + 32*(st%4) + 16*qt + 4*ks, 4)}, {c}")
        gaps = [[] for _ in range(72)]
        bar_gap = 8 * 8 - 1
        for nt in range(9):
            if nt + 1 < 9: r = reads(st, nt + 1)
            elif st < 16: r = reads(st + 1, 0)
            else: r = []
            for k2, x in enumerate(r): gaps[8 * nt + [0, 0, 1, 1, 2, 2, 4, 4][k2]].append(x)
        if st == 9:
            for nt in range(9):
                for qt in range(2):
                    stores.append(([f"s_mov_b32 s{s_t0}, {qt*36864 + (nt//4)*4096}"], I(f"buffer_store_dwordx4 {ar(GA + 8*nt + 4*qt, 4)}, v{vP}, s[{sPT}:{sPT+3}], s{s_t0} offen offset:{(nt%4)*1024}")))
        for gi in range(72):
            if gi == bar_gap and st < 16:
                assert not pend, (st, len(pend))
                gaps[gi - 1].append(I("s_waitcnt vmcnt(WAITSTAGE)", meta=("stagewait", [f"w{st+1}"])))
                gaps[gi].append("s_barrier")
                if st + 3 < 17:
                    first, ld = loads(st + 3)
                    gaps[gi - 2].append(first[0]); gaps[gi - 3].append(first[1])
                    pend = list(ld)
            elif gi % 8 in (3, 5, 7) and gi < bar_gap - 4 or gi % 8 in (3, 5, 7) and gi > bar_gap:
                if pend:
                    pre, ins = pend.pop(0); gaps[gi - 1] += pre; gaps[gi].append(ins)
                elif stores and gi >= 8:
                    pre, ins = stores.pop(0); gaps[gi - 1] += pre; gaps[gi].append(ins)
        if st == 9: body += stamp(2)
        body += weave(mf, [order_gap(x) for x in gaps])
    assert not pend and not stores
    e = stamp(3) + ["s_nop 7"]
    for nt in range(9):
        for qt in range(2):
            e += [f"s_mov_b32 s{s_t0}, {4*128*36*1024 + qt*36864 + (nt//4)*4096}",
                  f"buffer_store_dwordx4 {ar(SA + 8*nt + 4*qt, 4)}, v{vP}, s[{sPT}:{sPT+3}], s{s_t0} offen offset:{(nt%4)*1024}"]
    e += stamp_out(2, 4, 8) + ["Lk3_end:", "s_endpgm"]
    out = finalize([("a", L(p)), ("b", body), ("c", L(e))], "k3")
    return out[0] + out[1] + out[2]

def gen_k4():
    p = stamp(0) + ["s_cmp_ge_u32 s2, 1152", "s_cbranch_scc1 Lk4_end",
         "s_load_dwordx2 s[4:5], s[0:1], 0", "s_load_dwordx2 s[6:7], s[0:1], 64", "s_load_dwordx2 s[8:9], s[0:1], 80",
         "s_lshl_b32 s3, s2, 8", "v_add_u32 v1, s3, v0", "v_lshlrev_b32 v2, 4, v1",
         "v_lshrrev_b32 v3, 6, v1",
         "v_mul_u32_u24 v4, 58255, v3", "v_lshrrev_b32 v4, 21, v4",
         "v_mul_u32_u24 v5, 36, v4", "v_sub_u32 v5, v3, v5",
         "v_and_b32 v6, 15, v0", "v_lshl_add_u32 v4, v4, 4, v6", "v_mul_u32_u24 v4, 1152, v4",
         "v_lshl_add_u32 v4, v5, 5, v4", "v_bfe_u32 v6, v0, 4, 2", "v_lshl_add_u32 v4, v6, 3, v4",
         "s_waitcnt lgkmcnt(0)"]
    p += srd_off(12, 4, 0, 2048 * 1152) + srd_off(16, 6, 0, 2048 * 1152) + srd_off(20, 8, PT_OFF, PT_SZ)
    for k in range(8):
        p += [f"s_mov_b32 s24, {k*128*36*1024}", f"buffer_load_dwordx4 {vr(8+4*k,4)}, v2, s[20:23], s24 offen"]
    p += ["buffer_load_dwordx2 v[40:41], v4, s[12:15], 0 offen", "s_waitcnt vmcnt(0)"]
    for i in range(4):
        p += [f"v_add_f32 v{8+i}, v{8+i}, v{12+i}", f"v_add_f32 v{16+i}, v{16+i}, v{20+i}", f"v_add_f32 v{8+i}, v{8+i}, v{16+i}",
              f"v_add_f32 v{24+i}, v{24+i}, v{28+i}", f"v_add_f32 v{32+i}, v{32+i}, v{36+i}", f"v_add_f32 v{24+i}, v{24+i}, v{32+i}",
              f"v_mul_f32 v{8+i}, {CINV_BITS}, v{8+i}",
              f"v_mul_f32 v{12+i}, 0xbfb8aa3b, v{8+i}", f"v_exp_f32 v{12+i}, v{12+i}", "s_nop 0", f"v_add_f32 v{12+i}, 1.0, v{12+i}",
              f"v_rcp_f32 v{12+i}, v{12+i}", "s_nop 0", f"v_mul_f32 v{8+i}, v{8+i}, v{12+i}"]
    p += ["v_lshlrev_b32 v16, 16, v40", "v_and_b32 v17, 0xffff0000, v40", "v_lshlrev_b32 v18, 16, v41", "v_and_b32 v19, 0xffff0000, v41"]
    for i in range(4): p.append(f"v_fmac_f32 v{16+i}, v{24+i}, v{8+i}")
    p += ["v_cvt_pk_bf16_f32 v16, v16, v17", "v_cvt_pk_bf16_f32 v17, v18, v19",
          "buffer_store_dwordx2 v[16:17], v4, s[16:19], 0 offen"] + stamp_out(3, 1, 8) + ["Lk4_end:", "s_endpgm"]
    p = L(p)
    pr = check_hazards(p, "k4") + check_waits(p, "k4")
    assert not pr, pr
    return p

def main(path):
    a = A()
    ref = open("cdna_kernels/" + NAME + ".s.ref").read().splitlines()
    for l in ref:
        if l.startswith(";") and "@launch" not in l and "Override launch" not in l and "grid=ceil" not in l: a(l)
    ks = [("ln_kernel", gen_ln, (128, 384, 1024), 64, 64), ("att_kernel", gen_k2, (256, 256, 163840), 512, 256),
          ("proj_kernel", gen_k3, (256, 256, 147456), 512, 256), ("fin_kernel", gen_k4, (1152, 256, 0), 48, 48)]
    order = [int(x) for x in os.environ.get("LIST", ",".join(map(str, range(len(ks))))).split(",")]
    for n, _, (g, b, lds), _, _ in [ks[i] for i in order]: a(f"; @launch kernel={n} grid=({g},1,1) block=({b},1,1) lds={lds}")
    a('.amdgcn_target "amdgcn-amd-amdhsa--gfx950"')
    ln = gen_ln(); pr = check_hazards(ln, "ln") + check_waits(ln, "ln"); assert not pr, pr
    for n, f, _, _, _ in ks:
        a(kernel_head(n))
        for c in f(): a(c.text)
    for n, _, _, nv, acc in ks: a(kernel_desc(n, nv, acc))
    open(path, "w").write(a.text())

if __name__ == "__main__":
    main(sys.argv[1] if len(sys.argv) > 1 else "cdna_kernels/" + NAME + ".s")
```

```python
import sys, os
from asmlib import *
from isa import *
M16 = "v_mfma_f32_16x16x32_bf16"
OOB = 0x70000000
STAMP = int(os.environ.get("STAMP", "0"))
ST_OFF = 0xF000000
OPT = set(os.environ.get("OPT", "").split(","))
class Raw(I):
    def __init__(self, text):
        I.__init__(self, ".raw"); self.text = text
STN = []
def stamp(k, va=12):
    if not STAMP: return []
    if va == 12:
        STN.append(k); k = len(STN) - 1
    return [Raw(x) for x in ["s_memrealtime s[98:99]", "s_memtime s[100:101]", "s_waitcnt lgkmcnt(0)",
                             f"v_writelane_b32 v{va}, s98, {k}", f"v_writelane_b32 v{va+1}, s100, {k}"]]
def stamp_out(kidx, n, wsreg, va=12, dbgreg=None):
    if not STAMP: return []
    o = ["s_waitcnt lgkmcnt(0) vmcnt(0)"] + stamp(n, va)
    if va == 12: n = 63
    o += srd_off(92, wsreg, ST_OFF + kidx * 0x40000, 0x40000)
    o += ["s_lshl_b32 s3, s2, 9", "v_lshlrev_b32 v1, 3, v0", "v_add_u32 v1, s3, v1", f"v_cmp_ge_u32 vcc, {n}, v0", "s_and_saveexec_b64 s[4:5], vcc",
          f"s_cbranch_execz Lst{kidx}", f"buffer_store_dwordx2 v[{va}:{va+1}], v1, s[92:95], 0 offen"]
    if "dbgst" in OPT:
        i0 = STN.index("start"); i1 = len(STN) - 1
        o += srd_off(92, dbgreg, 0, 256)
        o += [f"v_readlane_b32 s6, v{va}, {i0}", "s_mov_b64 exec, 1", "s_nop 3", "s_not_b32 s7, s6", "v_mov_b32 v2, s7", "v_mov_b32 v3, s98", "v_mov_b32 v1, 0",
              "buffer_atomic_umax v2, v1, s[92:95], 0 offen offset:4 sc1", "buffer_atomic_umax v3, v1, s[92:95], 0 offen offset:8 sc1"]
        for q, nm in enumerate(["lnpub", "A0", "C0", "att0", "attend", "Dend", "polled"]):
            o += [f"v_readlane_b32 s7, v{va}, {STN.index(nm)}", "s_nop 3", "s_sub_u32 s7, s7, s6", f"v_mov_b32 v{20+q}, s7",
                  f"buffer_atomic_umax v{20+q}, v1, s[92:95], 0 offen offset:{36+4*q} sc1"]
    o += [f"Lst{kidx}:"]
    return [Raw(x) if isinstance(x, str) else x for x in o]

def L(x):
    out = []
    def rec(y):
        if isinstance(y, (list, tuple)):
            for z in y: rec(z)
        else: out.append(mk(y))
    rec(x)
    return out

def srd_off(d, base, off, nbytes, offs=None):
    o = [f"s_add_u32 s{d}, s{base}, {off if offs is None else 's%d' % offs}", f"s_addc_u32 s{d+1}, s{base+1}, 0",
         f"s_and_b32 s{d+1}, s{d+1}, 0xffff"]
    o += [f"s_mov_b32 s{d+2}, {nbytes}" if isinstance(nbytes, int) else nbytes, f"s_mov_b32 s{d+3}, 0x20000"]
    return o
def S4(d): return f"s[{d}:{d+3}]"

def xlane(op, r, t):
    return [f"v_mov_b32 v{t}, v{r}", "s_nop 1", f"v_permlane32_swap_b32 v{r}, v{t}", "s_nop 1", f"{op} v{r}, v{r}, v{t}",
            f"v_mov_b32 v{t}, v{r}", "s_nop 1", f"v_permlane16_swap_b32 v{r}, v{t}", "s_nop 1", f"{op} v{r}, v{r}, v{t}"]
def rnd_bf16(r):
    return [f"v_cvt_pk_bf16_f32 v{r}, v{r}, v{r}", f"v_lshlrev_b32 v{r}, 16, v{r}"]
def weave(mf, gaps):
    out = []
    for m, g in zip(mf, gaps):
        out.append(m); out += g
    return L(out)
def gkey(i): return 0 if i.kind in ("salu", "wait", "barrier", "branch", "label", "dir") else (1 if i.kind in ("dsr", "dsw", "dma", "vload", "vstore") else 2)
def order_gap(g): return sorted(L(g), key=gkey)
def swait(names): return I("s_waitcnt vmcnt(WAITSTAGE)", meta=("stagewait", names))

class It:
    def __init__(self, ins, earliest=0, deadline=10**9, chain=None, after=None):
        self.ins = L(ins); self.e = earliest; self.d = deadline; self.chain = chain; self.after = after; self.g = None
        self.k = gkey(self.ins[0])
def sgroups(sc):
    sc = L(sc); out = []
    for i, c in enumerate(sc):
        join = False
        if out:
            for d in sc[i:]:
                if ("scc", 0) in d.rd: join = True; break
                if ("scc", 0) in d.wr: break
        if join: out[-1].append(c)
        else: out.append([c])
    return out
def chain_items(lst, e, d, chain, after=None):
    o = []
    for pre, ins in lst:
        for grp in sgroups(pre): o.append(It(grp, e, d, chain, after))
        if ins is not None: o.append(It(ins, e, d, chain, after))
    return o
def sched(mf, items, fixed=None, tailins=None, vspace=2, name=""):
    n = len(mf); fixed = fixed or {}; tailins = tailins or {}
    gaps = [L(fixed.get(g, [])) for g in range(n)]
    cost = lambda i: 0 if i.kind in ("label", "dir") else (2 if is_vmem(i) or i.kind == "trans" else 1)
    used = [0] * n; sfree = [True] * n
    for g in range(n):
        sc = [i for i in gaps[g] if gkey(i) == 0]
        if sc: sfree[g] = False
        used[g] = max(0, len(sc) - 1) + sum(cost(i) for i in gaps[g] if gkey(i)) + sum(cost(mk(i)) for i in tailins.get(g, []))
    chains = {}
    for k, it in enumerate(items): chains.setdefault(it.chain if it.chain is not None else ("_", k), []).append(it)
    prev = {}
    lastv = -10
    for g in range(n):
        while True:
            ok = []
            for cid, q in chains.items():
                if not q: continue
                it = q[0]
                if it.e > g or (it.after is not None and (it.after.g is None or it.after.g >= g)): continue
                pv = prev.get(cid)
                if pv is not None and pv.g == g:
                    if pv.k > it.k or (pv.k == 0 and it.k == 1 and ("m0", 0) in pv.ins[-1].wr): continue
                i0 = it.ins[0]
                if it.k == 0:
                    if not sfree[g] or used[g] + len(it.ins) - 1 > 2 and len(it.ins) <= 3: continue
                    if len(it.ins) > 3 and used[g] > 0: continue
                elif is_vmem(i0):
                    if used[g] or g - lastv < vspace: continue
                elif used[g] + cost(i0) > 2: continue
                ok.append((it.d, len(ok), cid))
            if not ok: break
            _, _, cid = min(ok)
            it = chains[cid].pop(0); it.g = g; prev[cid] = it
            if it.d + 4 < g: print(f"  warn {name}: late by {g-it.d} at gap {g}: {it.ins[0].text}", file=sys.stderr)
            gaps[g] += it.ins
            if it.k == 0: sfree[g] = False; used[g] += len(it.ins) - 1
            else:
                used[g] += cost(it.ins[0])
                if is_vmem(it.ins[0]): lastv = g
    left = []
    rest = [q for q in chains.values() if q]
    while rest:
        q = min(rest, key=lambda q: q[0].d); it = q.pop(0)
        left += it.ins + (L(["s_nop 0"]) if ("m0", 0) in it.ins[-1].wr else [])
        rest = [q for q in rest if q]
    out = weave(mf, [order_gap(gaps[g]) + L(tailins.get(g, [])) for g in range(n)])
    return out, left

def resolve_stagewaits(ins):
    out = []; vm = []
    for c in ins:
        if c.meta and c.meta[0] == "stagewait":
            last = -1
            for idx, p in enumerate(vm):
                if p.tag and p.tag[2] in c.meta[1]: last = idx
            assert last >= 0, c.meta
            c = I(f"s_waitcnt vmcnt({min(len(vm) - 1 - last, 62)})")
        if is_vmem(c): vm.append(c)
        out.append(c)
    return out

def finalize(segs, name):
    lin = []
    for k, (lab, s) in enumerate(segs):
        lin.append(I(f".seg {k}")); lin += s
    lin = resolve_stagewaits(lin)
    lin = auto_waits(lin)
    pr = check_hazards(lin, name) + check_waits(lin, name) + check_scalar(lin) + check_lds(lin, name)
    for x in pr[:40]: print("PROBLEM", x, file=sys.stderr)
    if pr: raise SystemExit(f"{len(pr)} problems in {name}")
    out = []; cur = None
    for c in lin:
        if c.kind == "dir" and c.text.startswith(".seg"): cur = []; out.append(cur)
        else: cur.append(c)
    return out

def check_scalar(lin):
    pr = []; last = None
    for k, c in enumerate(lin):
        if ("scc", 0) in c.rd:
            if c.op.startswith("s_addc"):
                if not (last and last.op == "s_add_u32" and not last.text.startswith("s_add_u32 m0")): pr.append(f"[{k}] scc producer {last} for {c}")
                else:
                    d1 = int(c.text.split()[1].strip(",s")); d0 = int(last.text.split()[1].strip(",s"))
                    if d1 != d0 + 1: pr.append(f"[{k}] scc producer {last} for {c}")
            elif c.op.startswith("s_cselect"):
                if not (last and last.op.startswith("s_cmp")): pr.append(f"[{k}] scc producer {last} for {c}")
        if ("scc", 0) in c.wr: last = c
    return pr
```

```python
import re

REG = re.compile(r"^(-|abs\()?([vas])(\d+)\)?$")
RNG = re.compile(r"^(-)?([vas])\[(\d+):(\d+)\]$")

def regs(op):
    op = op.strip()
    m = RNG.match(op)
    if m: return [(m.group(2), i) for i in range(int(m.group(3)), int(m.group(4)) + 1)]
    m = REG.match(op)
    if m: return [(m.group(2), int(m.group(3)))]
    if op in ("vcc", "exec", "m0", "scc"): return [(op, 0)]
    if op in ("vcc_lo", "vcc_hi"): return [("vcc", 0)]
    if op in ("exec_lo", "exec_hi"): return [("exec", 0)]
    return []

TRANS = ("v_exp_f32", "v_log_f32", "v_rcp_f32", "v_rsq_f32", "v_sqrt_f32", "v_sin_f32", "v_cos_f32")

class I:
    __slots__ = ("text", "op", "kind", "rd", "wr", "tag", "srcc", "passes", "cnt", "meta")
    def __init__(self, text, tag=None, meta=None):
        self.text = text; self.tag = tag; self.meta = meta
        self.rd = set(); self.wr = set(); self.srcc = set(); self.passes = 0; self.cnt = None
        t = text.split(";")[0].strip()
        if not t or t.endswith(":") or t.startswith("."):
            self.op = t; self.kind = "label" if t.endswith(":") else "dir"; return
        sp = t.split(None, 1)
        op = self.op = sp[0]
        rest = sp[1] if len(sp) > 1 else ""
        ops = [x.strip() for x in rest.split(",")] if rest else []
        mods = ""
        if ops:
            l = ops[-1].split(None, 1)
            ops[-1] = l[0]
            mods = l[1] if len(l) > 1 else ""
        R = lambda i: regs(ops[i]) if i < len(ops) else []
        allr = lambda a: [r for i in range(a, len(ops)) for r in R(i)]
        if op.startswith("v_mfma"):
            self.kind = "mfma"; self.wr.update(R(0)); self.rd.update(allr(1)); self.srcc.update(R(3))
            self.passes = 4 if "16x16x32" in op else 8
        elif op == "s_waitcnt":
            self.kind = "wait"; self.cnt = {}
            for k, v in re.findall(r"(vmcnt|lgkmcnt|expcnt)\((\d+)\)", rest): self.cnt[k] = int(v)
        elif op == "s_barrier": self.kind = "barrier"
        elif op == "s_nop": self.kind = "nop"; self.cnt = int(ops[0], 0) + 1
        elif op in ("s_endpgm",): self.kind = "end"
        elif op.startswith("s_cbranch") or op == "s_branch":
            self.kind = "branch"
            if "scc" in op: self.rd.add(("scc", 0))
            if "vcc" in op: self.rd.add(("vcc", 0))
            if "exec" in op: self.rd.add(("exec", 0))
        elif op.startswith("s_load") or op.startswith("s_memtime") or op.startswith("s_memrealtime"):
            self.kind = "smem"; self.wr.update(R(0)); self.rd.update(allr(1))
        elif op.startswith("s_cmp"):
            self.kind = "salu"; self.rd.update(allr(0)); self.wr.add(("scc", 0))
        elif op in ("s_setprio", "s_sleep"):
            self.kind = "salu"
        elif op.startswith("s_"):
            self.kind = "salu"; self.wr.update(R(0)); self.rd.update(allr(1))
            if "saveexec" in op: self.wr.add(("exec", 0)); self.rd.add(("exec", 0))
            if op.startswith(("s_cselect", "s_addc", "s_subb")): self.rd.add(("scc", 0))
            if not op.startswith(("s_mov", "s_cselect", "s_mul", "s_getreg")): self.wr.add(("scc", 0))
        elif op.startswith("ds_read") or op.startswith("ds_bpermute") or op.startswith("ds_swizzle"):
            self.kind = "dsr"; self.wr.update(R(0)); self.rd.update(allr(1))
        elif op.startswith("ds_write") or op.startswith("ds_or") or op.startswith("ds_add") or op.startswith("ds_max"):
            self.kind = "dsw"; self.rd.update(allr(0))
        elif op.startswith("buffer_load") or op.startswith("global_load"):
            if " lds" in (" " + mods) or "_lds_" in op:
                self.kind = "dma"; self.rd.update(allr(0)); self.rd.add(("m0", 0))
            else:
                self.kind = "vload"; self.wr.update(R(0)); self.rd.update(allr(1))
        elif op.startswith("buffer_store") or op.startswith("global_store"):
            self.kind = "vstore"; self.rd.update(allr(0))
        elif op.startswith("buffer_atomic") or op.startswith("global_atomic"):
            if "sc0" in mods:
                self.kind = "vload"; self.wr.update(R(0)); self.rd.update(allr(0) if op.startswith("buffer") else allr(1))
            else:
                self.kind = "vstore"; self.rd.update(allr(0))
        elif op.startswith("buffer_wbl2") or op.startswith("buffer_inv"):
            self.kind = "vstore"
        elif op.startswith("v_"):
            self.kind = "trans" if op.replace("_e32", "").replace("_e64", "") in TRANS else "valu"
            if op.startswith("v_cmp"):
                self.wr.update(R(0)); self.rd.update(allr(1))
                if op.startswith("v_cmpx"): self.wr.add(("exec", 0))
            elif op.startswith("v_permlane") and "swap" in op:
                self.wr.update(R(0)); self.wr.update(R(1)); self.rd.update(allr(0))
            elif op.startswith(("v_add_co", "v_sub_co", "v_addc_co", "v_subb_co")):
                self.wr.update(R(0)); self.wr.update(R(1)); self.rd.update(allr(2))
            elif op.startswith(("v_fmac", "v_dot2c")) or "_dpp" in op:
                self.wr.update(R(0)); self.rd.update(allr(0))
            else:
                self.wr.update(R(0)); self.rd.update(allr(1))
        else:
            raise ValueError("unknown instr: " + text)
    def states(self):
        if self.kind in ("label", "dir"): return 0
        if self.kind == "nop": return self.cnt
        return 1
    def __repr__(self): return self.text

def mk(x):
    return x if isinstance(x, I) else I(x)

VEC = ("v", "a")
def is_valu(i): return i.kind in ("valu", "trans")
def is_vmem(i): return i.kind in ("vload", "vstore", "dma")

def check_hazards(ins, name=""):
    probs = []
    n = len(ins)
    for k, c in enumerate(ins):
        if c.kind in ("label", "dir", "nop", "wait", "barrier", "end"): continue
        dist = 0
        j = k - 1
        while j >= 0 and dist < 20:
            p = ins[j]
            need = 0
            if p.kind == "mfma":
                big = {4: 8, 8: 12}[p.passes]
                if c.kind == "mfma":
                    ab = c.rd - c.srcc if not (c.srcc & (c.rd - c.srcc)) else c.rd
                    opsAB = set(regs(c.text.split(",")[1])) | set(regs(c.text.split(",")[2]))
                    if p.wr & opsAB: need = big
                    elif p.wr & c.srcc and p.wr != c.srcc: need = {4: 6, 8: 10}[p.passes]
                    elif p.wr & c.wr and p.wr != c.srcc: need = max(need, 0)
                elif is_valu(c):
                    if p.wr & (c.rd | c.wr): need = big
                    elif p.srcc & c.wr: need = {4: 3, 8: 7}[p.passes]
                elif c.kind in ("dsr", "dsw", "vload", "vstore", "dma"):
                    if p.wr & (c.rd | c.wr): need = big
            elif is_valu(p):
                vw = {r for r in p.wr if r[0] in VEC}
                sw = {r for r in p.wr if r[0] in ("s", "vcc")}
                if c.kind == "mfma" and vw & c.rd: need = 2
                if c.kind == "mfma" and ("exec", 0) in p.wr: need = 4
                if is_valu(c):
                    if p.kind == "trans" and c.kind != "trans" and vw & c.rd: need = max(need, 1)
                    if (c.op.startswith("v_permlane") or "_dpp" in c.op) and vw & c.rd: need = max(need, 2)
                    if c.op.startswith(("v_readlane", "v_readfirstlane")) and vw & c.rd: need = max(need, 1)
                    if sw & c.rd: need = max(need, 2)
                    if c.op.startswith("v_cndmask") and ("vcc", 0) in p.wr and ("vcc", 0) in c.rd: need = max(need, 2)
                    if ("exec", 0) in p.wr and ("_dpp" in c.op or c.op.startswith(("v_permlane", "v_readlane", "v_readfirstlane"))): need = max(need, 5)
                if is_vmem(c) and sw & c.rd: need = max(need, 5)
                if c.kind == "salu" and sw & c.rd: need = max(need, 1)
                if c.kind == "branch" and (sw & c.rd): need = max(need, 1)
            elif p.kind == "salu":
                if ("m0", 0) in p.wr and c.kind == "dma": need = 1
            elif p.kind == "vstore" and ("x4" in p.op or "x3" in p.op):
                data = set(regs(p.text.split(",")[0].split(None, 1)[1])) if p.op.startswith("buffer") else set(regs(p.text.split(",")[1]))
                if data & c.wr: need = 2 if is_valu(c) else 1
            if need > dist:
                probs.append(f"{name}[{k}] hazard need {need} have {dist}: '{p.text}' -> '{c.text}'")
            dist += p.states()
            j -= 1
    return probs

class WaitSim:
    def __init__(self):
        self.lg = []
        self.vm = []
    def need(self, c):
        touch = c.rd | c.wr
        lgN = vmN = None
        for idx, p in enumerate(self.lg):
            if p.wr & touch:
                lgN = len(self.lg) - 1 - idx
                if p.kind == "smem" or any(q.kind == "smem" for q in self.lg): lgN = 0
        for idx, p in enumerate(self.vm):
            if p.wr & touch: vmN = len(self.vm) - 1 - idx
        return lgN, vmN
    def step(self, c):
        if c.kind == "wait":
            if "lgkmcnt" in c.cnt:
                n = c.cnt["lgkmcnt"]
                if any(q.kind == "smem" for q in self.lg) and n > 0: pass
                else: self.lg = self.lg[len(self.lg) - n:] if n < len(self.lg) and n > 0 else ([] if n == 0 else self.lg)
            if "vmcnt" in c.cnt:
                n = c.cnt["vmcnt"]
                self.vm = self.vm[len(self.vm) - n:] if n < len(self.vm) and n > 0 else ([] if n == 0 else self.vm)
        elif c.kind in ("dsr", "dsw", "smem"): self.lg.append(c)
        elif is_vmem(c): self.vm.append(c)

def auto_waits(ins, sim=None):
    sim = sim or WaitSim()
    out = []
    for c in ins:
        if c.kind not in ("label", "dir", "wait", "nop", "barrier", "end"):
            lgN, vmN = sim.need(c)
            if vmN is not None: vmN = min(vmN, 62)
            if lgN is not None or vmN is not None:
                pos = len(out); lg_after = 0; vm_after = 0
                j = len(out) - 1
                while j >= 0 and out[j].kind not in ("mfma", "label", "branch", "barrier", "dir", "wait"):
                    if out[j].kind in ("dsr", "dsw", "smem"): lg_after += 1
                    if is_vmem(out[j]): vm_after += 1
                    j -= 1
                ok = j >= 0 and out[j].kind in ("mfma", "wait") and (lgN is None or lg_after <= lgN) and (vmN is None or vm_after <= vmN)
                if ok and out[j].kind == "wait" and not (j > 0 and out[j - 1].kind == "mfma"): ok = False
                if lgN is not None and lgN > 15: raise ValueError("lgkm overflow")
                if ok:
                    l2 = None if lgN is None else lgN - lg_after
                    v2 = None if vmN is None else vmN - vm_after
                    if out[j].kind == "wait":
                        cnt = dict(out[j].cnt)
                        if l2 is not None: cnt["lgkmcnt"] = min(cnt.get("lgkmcnt", 99), l2)
                        if v2 is not None: cnt["vmcnt"] = min(cnt.get("vmcnt", 99), v2)
                        out[j] = I("s_waitcnt " + " ".join(f"{k}({v})" for k, v in sorted(cnt.items(), reverse=True)))
                    else:
                        s = []
                        if v2 is not None: s.append(f"vmcnt({v2})")
                        if l2 is not None: s.append(f"lgkmcnt({l2})")
                        out.insert(j + 1, I("s_waitcnt " + " ".join(s)))
                else:
                    s = []
                    if vmN is not None: s.append(f"vmcnt({min(vmN,63)})")
                    if lgN is not None: s.append(f"lgkmcnt({lgN})")
                    out.append(I("s_waitcnt " + " ".join(s)))
                s = []
                if vmN is not None: s.append(f"vmcnt({min(vmN,63)})")
                if lgN is not None: s.append(f"lgkmcnt({lgN})")
                sim.step(I("s_waitcnt " + " ".join(s)))
        sim.step(c)
        out.append(c)
    return out

def check_waits(ins, name=""):
    sim = WaitSim(); probs = []
    slot_content = {}
    wr_pending = {}
    wr_retired_epoch = {}
    rd_pending = {}
    rd_retired_epoch = {}
    epoch = 0
    for k, c in enumerate(ins):
        if c.kind not in ("label", "dir", "wait", "nop", "barrier", "end"):
            lgN, vmN = sim.need(c)
            if lgN is not None or vmN is not None:
                probs.append(f"{name}[{k}] missing wait lg={lgN} vm={vmN} before '{c.text}'")
        if len(sim.lg) > 15 + 0 and c.kind == "wait" and c.cnt.get("lgkmcnt", 0) > 15: probs.append("lgkm>15")
        if c.tag and not isinstance(c.tag[1], list):
            t, slot, content = c.tag[:3]
            private = len(c.tag) > 3
            if t == "w":
                if slot_content.get(slot) != content:
                    if rd_pending.get(slot): probs.append(f"{name}[{k}] WAR: write {content} into {slot} while reads pending")
                    elif not private and rd_retired_epoch.get(slot, -1) >= epoch: probs.append(f"{name}[{k}] WAR: write {content} into {slot} without barrier after reads")
                    slot_content[slot] = content
                wr_pending.setdefault(content, []).append(c)
            else:
                if slot_content.get(slot) != content: probs.append(f"{name}[{k}] read {content} but slot {slot} holds {slot_content.get(slot)}")
                if wr_pending.get(content): probs.append(f"{name}[{k}] RAW: read {content} with writes pending")
                elif not private and wr_retired_epoch.get(content, -1) >= epoch: probs.append(f"{name}[{k}] RAW: read {content} without barrier")
                rd_pending.setdefault(slot, []).append(c)
        sim.step(c)
        if c.kind == "wait":
            live = set(map(id, sim.lg)) | set(map(id, sim.vm))
            for content, l in wr_pending.items():
                l2 = [x for x in l if id(x) in live]
                if len(l2) != len(l): wr_retired_epoch[content] = epoch
                wr_pending[content] = l2
            for slot, l in rd_pending.items():
                l2 = [x for x in l if id(x) in live]
                if len(l2) != len(l): rd_retired_epoch[slot] = epoch
                rd_pending[slot] = l2
        if c.kind == "barrier": epoch += 1
    return probs

def check_lds(ins, name=""):
    sim = WaitSim(); probs = []; epoch = 0
    recs = []
    ov = lambda a, b: any(x[0] < y[1] and y[0] < x[1] for x in a for y in b)
    for k, c in enumerate(ins):
        if c.tag and c.tag[0] in ("w", "r") and isinstance(c.tag[1], list):
            kind, rg, content = c.tag
            if kind == "w":
                for r in recs:
                    if r["content"] != content and ov(r["rg"], rg) and (r["done"] is None or r["done"] >= epoch):
                        probs.append(f"{name}[{k}] LDS {'WAR' if r['kind']=='r' else 'WAW'}: write {content} over {r['content']} not retired+barrier: {c.text}")
                        break
                recs = [r for r in recs if not (r["content"] != content and ov(r["rg"], rg) and r["kind"] == "r")]
                for r in recs:
                    if r["content"] != content and r["kind"] == "w" and ov(r["rg"], rg): r["dead"] = r.get("dead", []) + rg
            else:
                ws = [r for r in recs if r["kind"] == "w" and r["content"] == content]
                if not ws: probs.append(f"{name}[{k}] LDS read of never written {content}")
                for r in ws:
                    if ov(r.get("dead", []), rg): probs.append(f"{name}[{k}] LDS read {content} overwritten: {c.text}"); break
                    if r["done"] is None or r["done"] >= epoch: probs.append(f"{name}[{k}] LDS RAW: read {content} not retired+barrier: {c.text}"); break
                if ws and not all(any(y[0] <= x[0] and x[1] <= y[1] for r in ws for y in r["rg"]) for x in rg):
                    probs.append(f"{name}[{k}] LDS read {content} outside written range {rg}")
            recs.append(dict(kind=kind, rg=rg, content=content, ins=c, done=None))
        sim.step(c)
        if c.kind == "wait":
            live = set(map(id, sim.lg)) | set(map(id, sim.vm))
            for r in recs:
                if r["done"] is None and id(r["ins"]) not in live: r["done"] = epoch
            recs = [r for r in recs if not (r["kind"] == "r" and r["done"] is not None and r["done"] < epoch)]
        if c.kind == "barrier": epoch += 1
    return probs
```

```python
from gcommon import *
import gcommon

XN_OFF = 0
AF_OFF = 0x400000
FL_OFF = 0x2800000
PT_OFF = 0x3000000
XN_SZ = 18 * 128 * 1024
AF_SZ = 272 * 128 * 1024
PT_HALF = 32 * 64 * 9 * 1024
PT_SZ = 2 * PT_HALF
SPIN_MAX = 1 << 20
C_BITS = 0x3e0293ee
CINV_BITS = 0x40faf233
STG = [73728, 92160, 110592, 129024, 0, 18432]
DUMMY = 156672; FLAG = 158720
KB = 4096; VB = 69632
def kphys(i): return (i + 2) % 4
def cimg(t): return ((t + 4) % 17) if t < 17 else 11
pX, pK, pV, pWQ, pWO, pW1, pW2, pOUT, pDBG, pWS = 4, 6, 8, 10, 12, 16, 18, 20, 22, 24
sXN, sWQ, sW1, sW5, sK, sV, sAF, sFL, sW2, sPT = 28, 32, 36, 40, 44, 48, 52, 56, 60, 64
sX = 44; sDBG = 48
sWO, sX2, sOUT = 28, 32, 36
sCODE = 92
s_h, s_rb, s_w, s_j, s_cb = 68, 69, 70, 71, 72
s_xo, s_qo, s_wo, s_5o, s_5st, s_5m, s_5k = 73, 74, 75, 76, 77, 78, 79
s_wm, s_m, s_w2k, s_w4k, s_ko, s_vo, s_cnt, s_rerun, s_t0, s_t1, s_t2, s_hf = 80, 81, 82, 83, 84, 85, 86, 87, 88, 89, 90, 91
s_hs, s_same, s_fg, s_ft = 26, 27, 14, 15
s_m8, s_cw, s_bo, s_spin, s_at, s_own, s_step = 40, 41, 42, 43, 73, 3, 74
s_ex = 96
vL4 = 1; vX = 2; vD = 3
vKd, vVd, vKa, vVa = 14, 18, 20, 24
AF = 32
vCa, vPw, vPr, vZ0 = 56, 59, 60, 63
vWq0, vWq1, vW10, vW11, vW5, vAq, vAp, vAs, vWarmA, vJunkA = 64, 65, 66, 67, 68, 69, 71, 73, 75, 76
vT = 80
HACC = 112
HB = [112, 144, 176, 208]
FB = [64, 80, 96, 128, 160, 192, 224, 240]
SBK = [[64, 80], [96, 128]]; PB = [160, 192]; MR = 224; ONES = 240; LM = 244; LA = 252; vWarm = 255
MFL = 32; RR = 36; vJunk = 40; vOne = 44; vPoll = 45; vU = 46
QACC = 0; XR = 144; KF = 144; VF = 176
SLOW = []

def piece_off(dst, pre, pitch, oob16, perm=True):
    a, b, c = vT + 1, vT + 2, vT + 3
    o = list(pre)
    o += [f"v_mul_u32_u24 v{a}, 3641, v{vT}", f"v_lshrrev_b32 v{a}, 16, v{a}",
          f"v_mul_u32_u24 v{b}, 18, v{a}", f"v_sub_u32 v{b}, v{vT}, v{b}"]
    if perm:
        o += [f"v_bfe_u32 v{c}, v{a}, 2, 2", f"v_lshlrev_b32 v{c}, 3, v{c}",
              f"v_and_b32 v{dst}, 3, v{a}", f"v_or_b32 v{c}, v{c}, v{dst}",
              f"v_bfe_u32 v{dst}, v{a}, 4, 1", f"v_lshl_or_b32 v{c}, v{dst}, 2, v{c}", f"v_mul_u32_u24 v{c}, {pitch}, v{c}"]
    else: o += [f"v_mul_u32_u24 v{c}, {pitch}, v{a}"]
    o += [f"v_lshl_add_u32 v{dst}, v{b}, 4, v{c}"]
    if oob16 is not None:
        o += [f"v_cmp_le_u32 vcc, {oob16}, v{b}", f"v_mov_b32 v{a}, {OOB}", "s_nop 0", f"v_cndmask_b32 v{dst}, v{dst}, v{a}, vcc"]
    return o

def poll(name, vaddr, srd_, soff, off, val, vdat, acquire=False):
    ld = f"buffer_load_dword v{vdat}, v{vaddr}, {S4(srd_)}, {soff} offen offset:{off} sc1"
    chk = [f"v_cmp_ne_u32 vcc, {val}, v{vdat}"]
    if acquire: chk += ["s_nop 0", f"s_or_b32 s{s_spin}, vcc_lo, s{s_same}", f"s_cbranch_scc1 Lspin_{name}"]
    else: chk += ["s_nop 0", f"s_cbranch_vccnz Lspin_{name}"]
    chk += [f"Lret_{name}:"]
    done = f"Lacq_{name}" if acquire else f"Lret_{name}"
    slow = [f"Lspin_{name}:", f"s_mov_b32 s{s_spin}, {SPIN_MAX}", f"Lspin2_{name}:", ld, "s_waitcnt vmcnt(0)",
            f"v_cmp_ne_u32 vcc, {val}, v{vdat}", f"s_sub_u32 s{s_spin}, s{s_spin}, 1", f"s_cbranch_scc1 {done}",
            f"s_cbranch_vccz {done}", "s_sleep 1", f"s_branch Lspin2_{name}"]
    if acquire: slow += [f"{done}:", f"s_cmp_eq_u32 s{s_same}, 0", f"s_cbranch_scc1 Lret_{name}", "buffer_inv sc1", "s_waitcnt vmcnt(0)", f"s_branch Lret_{name}"]
    SLOW.extend(L(slow))
    return I(ld), L(chk)

def release(name):
    SLOW.extend(L([f"Lrel_{name}:", "buffer_wbl2 sc1", "s_waitcnt vmcnt(0)", f"s_branch Lrel2_{name}"]))
    return L([f"s_cmp_lg_u32 s{s_same}, 0", f"s_cbranch_scc1 Lrel_{name}", f"Lrel2_{name}:"])

def w_stage(s):
    sl = s % 6; b = STG[sl]
    tq = ("w", [(b, b + 18432), (DUMMY, DUMMY + 1024)], f"w{s}")
    o = [([f"s_add_u32 m0, s{s_w2k}, {b}"], I(f"buffer_load_dwordx4 v{vWq0}, {S4(sWQ)}, s{s_qo} offen lds", tag=tq)),
         ([f"s_add_u32 m0, s{s_w2k}, {b + 9216}"], I(f"buffer_load_dwordx4 v{vW10}, {S4(sW1)}, s{s_wo} offen lds", tag=tq)),
         ([f"s_add_u32 m0, s{s_w2k}, {b + 1024}"], I(f"buffer_load_dwordx4 v{vWq1}, {S4(sWQ)}, s{s_qo} offen lds", tag=tq)),
         ([f"s_add_u32 m0, s{s_w2k}, {b + 10240}"], I(f"buffer_load_dwordx4 v{vW11}, {S4(sW1)}, s{s_wo} offen lds", tag=tq)),
         ([f"s_and_b32 m0, s{s_5k}, {b}", f"s_add_u32 m0, m0, s{s_5m}"], I(f"buffer_load_dwordx4 v{vW5}, {S4(sW5)}, s{s_5o} offen lds", tag=tq)),
         ([f"s_add_u32 s{s_qo}, s{s_qo}, {32*8192}", f"s_add_u32 s{s_wo}, s{s_wo}, {32*9216}", f"s_add_u32 s{s_5o}, s{s_5o}, s{s_5st}"], None)]
    for _, i in o:
        if i is not None: i.tag = ("w", [(b, b + 18432)], f"w{s}")
    return o
def x_stage(s):
    sl = s % 6
    o = [([], I(f"buffer_load_dwordx4 {ar(XR + 16*sl + 4*qt, 4)}, v{vX}, {S4(sXN)}, s{s_xo} offen offset:{1024*qt} sc1")) for qt in range(4)]
    return o + [([f"s_add_u32 s{s_xo}, s{s_xo}, 131072"], None)]
def flat(lst):
    o = []
    for pre, ins in lst:
        o += pre
        if ins is not None:
            if pre and "m0" in pre[-1].split(",")[0]: o.append("s_nop 0")
            o.append(ins)
    return o

def red32(r, t):
    o = []
    for m in ("row_ror:2", "row_ror:4", "row_ror:8"):
        o += ["s_nop 1", f"v_add_f32_dpp v{r}, v{r}, v{r} {m} row_mask:0xf bank_mask:0xf"]
    return o + xlane("v_add_f32", r, t)

def startup():
    XL = 112
    XF = 128
    p = ([Raw("v_mov_b32 v12, 0"), Raw("v_mov_b32 v13, 0")] if STAMP else []) + stamp("start")
    p += ["s_cmp_ge_u32 s2, 256", "s_cbranch_scc1 Lend",
          "s_load_dwordx16 s[4:19], s[0:1], 0", "s_load_dwordx4 s[20:23], s[0:1], 64", "s_load_dwordx2 s[24:25], s[0:1], 80",
          f"s_getpc_b64 s[{sCODE}:{sCODE+1}]", "Lpc:", f"s_and_b32 s{sCODE+1}, s{sCODE+1}, 0xffff", f"s_mov_b32 s{sCODE+2}, Lcode_end-Lpc", f"s_mov_b32 s{sCODE+3}, 0x20000",
          f"s_lshr_b32 s{s_t0}, s2, 3", f"s_lshl_b32 s{s_t0}, s{s_t0}, 12", f"v_lshlrev_b32 v{vWarmA}, 4, v0", f"v_add_u32 v{vWarmA}, s{s_t0}, v{vWarmA}",
          f"buffer_load_dwordx4 {vr(vJunkA,4)}, v{vWarmA}, {S4(sCODE)}, 0 offen",
          "v_and_b32 v1, 63, v0", f"v_lshrrev_b32 v{vT}, 6, v0",
          f"s_and_b32 s{s_j}, s2, 7", f"s_lshr_b32 s{s_cb}, s2, 6", f"s_lshl2_add_u32 s{s_h}, s{s_j}, s{s_cb}",
          f"s_lshr_b32 s{s_rb}, s2, 3", f"s_and_b32 s{s_rb}, s{s_rb}, 7",
          f"v_readfirstlane_b32 s{s_w}, v{vT}",
          f"s_lshl_b32 s{s_t0}, s{s_rb}, 5", f"s_add_u32 s{s_t0}, s{s_t0}, s{s_h}", f"s_lshl2_add_u32 s{s_t0}, s{s_t0}, s{s_w}", f"s_lshl_b32 s{s_t0}, s{s_t0}, 1",
          f"v_and_b32 v{vT+4}, 1, v1", f"v_add_u32 v{vT+4}, s{s_t0}, v{vT+4}", f"v_lshrrev_b32 v{vT+5}, 1, v1",
          f"v_mul_u32_u24 v{vT+6}, 1152, v{vT+4}", f"v_lshl_add_u32 v{vT+6}, v{vT+5}, 4, v{vT+6}",
          f"v_cmp_gt_u32 s[{s_ex}:{s_ex+1}], 8, v{vT+5}", f"v_mov_b32 v{vT+8}, {OOB}",
          f"s_lshl_b32 s{s_w2k}, s{s_w}, 11", f"s_lshl_b32 s{s_w4k}, s{s_w}, 12",
          f"v_cndmask_b32 v{vT+7}, v{vT+8}, v{vT+6}, s[{s_ex}:{s_ex+1}]",
          "s_waitcnt lgkmcnt(0)"]
    p += srd_off(sX, pX, 0, 2048 * 1152)
    p += [f"buffer_load_dwordx4 {vr(XL,4)}, v{vT+6}, {S4(sX)}, 0 offen", f"buffer_load_dwordx4 {vr(XL+4,4)}, v{vT+6}, {S4(sX)}, 0 offen offset:512",
          f"buffer_load_dwordx4 {vr(XL+8,4)}, v{vT+7}, {S4(sX)}, 0 offen offset:1024"]
    p += [f"s_lshl_b32 s{s_t0}, s{s_w}, 7"]
    p += piece_off(vWq0, [f"v_add_u32 v{vT}, s{s_t0}, v1"], 8192, 16) + piece_off(vW10, [], 9216, None)
    p += piece_off(vWq1, [f"v_add_u32 v{vT}, 64, v{vT}"], 8192, 16) + piece_off(vW11, [], 9216, None)
    p += [f"s_cmp_eq_u32 s{s_w}, 0", f"s_mov_b32 s{s_t0}, 9216", f"s_cselect_b32 s{s_t0}, 8192, s{s_t0}", f"s_cselect_b32 s{s_t1}, 16, 18",
          f"s_mov_b32 s{s_5m}, {9216+8192}", f"s_cselect_b32 s{s_5m}, 8192, s{s_5m}",
          f"s_cmp_ge_u32 s{s_w}, 2", f"s_cselect_b32 s{s_t1}, 0, s{s_t1}", f"s_cselect_b32 s{s_5m}, {DUMMY}, s{s_5m}", f"s_cselect_b32 s{s_5k}, 0, -1"]
    p += piece_off(vW5, [f"v_add_u32 v{vT}, 512, v1"], f"s{s_t0}", f"s{s_t1}")
    p += [f"s_lshl_b32 s{s_5st}, s{s_t0}, 5"]
    p += [f"s_lshl_b32 s{s_t0}, s{s_h}, 8"] + srd_off(sWQ, pWQ, 0, f"s_sub_u32 s{sWQ+2}, {576*8192}, s{s_t0}", offs=s_t0)
    p += [f"s_mul_i32 s{s_t0}, s{s_h}, 288"] + srd_off(sW1, pW1, 0, f"s_sub_u32 s{sW1+2}, {576*9216}, s{s_t0}", offs=s_t0)
    p += [f"s_cmp_eq_u32 s{s_w}, 0", f"s_cselect_b32 s{sW5}, s{sWQ}, s{sW1}", f"s_cselect_b32 s{sW5+1}, s{sWQ+1}, s{sW1+1}",
          f"s_cselect_b32 s{sW5+2}, s{sWQ+2}, s{sW1+2}", f"s_mov_b32 s{sW5+3}, 0x20000"]
    p += [f"s_mov_b32 s{s_xo}, 0", f"s_mov_b32 s{s_qo}, 0", f"s_mov_b32 s{s_wo}, 0", f"s_mov_b32 s{s_5o}, 0"]
    NPRE = 2
    for s in range(NPRE): p += flat(w_stage(s))
    p += srd_off(sXN, pWS, XN_OFF, XN_SZ) + srd_off(sFL, pWS, FL_OFF, 16384) + srd_off(sDBG, pDBG, 0, 256)
    p += [f"v_lshrrev_b32 v{vT}, 2, v{vT+5}", f"v_lshlrev_b32 v{vT}, 17, v{vT}", f"v_and_b32 v{vT+1}, 3, v{vT+5}", f"v_lshl_add_u32 v{vT}, v{vT+1}, 8, v{vT}",
          f"v_lshrrev_b32 v{vT+1}, 4, v{vT+4}", f"v_lshl_add_u32 v{vT}, v{vT+1}, 10, v{vT}", f"v_and_b32 v{vT+1}, 15, v{vT+4}",
          f"v_lshl_add_u32 v{vT+6}, v{vT+1}, 4, v{vT}", f"v_cndmask_b32 v{vT+7}, v{vT+8}, v{vT+6}, s[{s_ex}:{s_ex+1}]"]
    p += [f"s_lshl3_add_u32 s{s_fg}, s{s_j}, s{s_rb}", f"s_lshl_b32 s{s_fg}, s{s_fg}, 7",
          f"s_lshr_b32 s{s_ft}, s2, 3", f"s_lshl_b32 s{s_ft}, s{s_ft}, 7", f"s_add_u32 s{s_ft}, s{s_ft}, 8192",
          f"s_lshl2_add_u32 s{s_t0}, s{s_cb}, s{s_fg}", f"s_lshl2_add_u32 s{s_t1}, s{s_j}, s{s_ft}", f"s_sub_u32 s{s_t1}, s{s_t1}, 96",
          f"s_getreg_b32 s{s_t2}, hwreg(HW_REG_XCC_ID, 0, 4)",
          f"v_lshl_add_u32 v{vT}, v0, 4, s{s_t0}", f"v_lshl_add_u32 v{vT+1}, v0, 5, s{s_t1}", "v_cmp_gt_u32 vcc, 3, v0", f"v_mov_b32 v{vT+2}, s{s_t2}", "s_nop 0",
          f"v_cndmask_b32 v{vT}, v{vT+1}, v{vT}, vcc", "v_cmp_gt_u32 vcc, 5, v0", "s_nop 1", f"v_cndmask_b32 v{vT+9}, v{vT+8}, v{vT}, vcc",
          "v_cmp_eq_u32 vcc, 2, v0", "s_nop 1", f"v_cndmask_b32 v{vT+10}, 0, v{vT+2}, vcc",
          "v_cmp_eq_u32 vcc, 0, v0", "s_nop 1", f"v_cndmask_b32 v{vZ0}, v{vT+8}, 0, vcc",
          f"buffer_store_dword v{vT+10}, v{vT+9}, {S4(sFL)}, 0 offen sc1"]
    m, q, t = vT + 12, vT + 13, vT + 14
    for i in range(12): p += [f"v_lshlrev_b32 v{XF+2*i}, 16, v{XL+i}", f"v_and_b32 v{XF+2*i+1}, 0xffff0000, v{XL+i}"]
    p += [f"v_add_f32 v{m}, v{XF}, v{XF+1}", f"v_add_f32 v{q}, v{XF+2}, v{XF+3}"]
    for i in range(4, 24, 2): p += [f"v_add_f32 v{m}, v{m}, v{XF+i}", f"v_add_f32 v{q}, v{q}, v{XF+i+1}"]
    p += [f"v_add_f32 v{m}, v{m}, v{q}"] + red32(m, t) + [f"v_mul_f32 v{m}, 0x3ae38e39, v{m}", "s_nop 0",
          f"v_cndmask_b32 v{t+1}, 0, v{m}, s[{s_ex}:{s_ex+1}]", f"v_mov_b32 v{q}, 0", f"v_mov_b32 v{t+2}, 0"]
    for i in range(0, 24, 2):
        mm = m if i < 16 else t + 1
        p += [f"v_sub_f32 v{t+3}, v{XF+i}, v{mm}", f"v_sub_f32 v{t+4}, v{XF+i+1}, v{mm}", f"v_fmac_f32 v{q}, v{t+3}, v{t+3}", f"v_fmac_f32 v{t+2}, v{t+4}, v{t+4}"]
    p += [f"v_add_f32 v{q}, v{q}, v{t+2}"] + red32(q, t) + [f"v_mul_f32 v{q}, 0x3ae38e39, v{q}"]
    p += rnd_bf16(q) + [f"v_add_f32 v{q}, 0x3727c5ac, v{q}"] + rnd_bf16(q) + [f"v_sqrt_f32 v{q}, v{q}", "s_nop 0"] + rnd_bf16(q)
    p += [f"v_rcp_f32 v{q}, v{q}"] + rnd_bf16(m) + [f"v_mul_f32 v{q}, {C_BITS}, v{q}"]
    p += [f"s_mov_b32 s{s_t0}, {8*131072}", f"s_mov_b32 s{s_t1}, {16*131072}"]
    for blk in range(3):
        for i in range(8 * blk, 8 * blk + 8): p += [f"v_sub_f32 v{XF+i}, v{XF+i}, v{m}", f"v_mul_f32 v{XF+i}, v{XF+i}, v{q}"]
        for i in range(4 * blk, 4 * blk + 4): p.append(f"v_cvt_pk_bf16_f32 v{XL+i}, v{XF+2*i}, v{XF+2*i+1}")
        p.append(f"buffer_store_dwordx4 {vr(XL+4*blk,4)}, v{vT+6+(blk==2)}, {S4(sXN)}, {['0', 's%d' % s_t0, 's%d' % s_t1][blk]} offen sc1")
    p += [f"v_mov_b32 v{vT+11}, 1", f"s_lshl_b32 s{s_t2}, s{s_rb}, 5", "s_waitcnt vmcnt(0)", "s_barrier"] + stamp("lnpub")
    p += [f"buffer_atomic_add v{vT+11}, v{vZ0}, {S4(sDBG)}, s{s_t2} offen sc1"]
    for s in range(NPRE, 5): p += flat(w_stage(s))
    p += setup2()
    p += [f"s_cmp_lg_u32 s{s_w}, 0", "s_cbranch_scc1 Lln_ok", f"s_mov_b32 s{s_t0}, {SPIN_MAX}", f"v_mov_b32 v{vT}, 0", "Lln_spin:",
          Raw(f"buffer_load_dword v{vT+1}, v{vT}, {S4(sDBG)}, s{s_t2} offen sc1"), Raw("s_waitcnt vmcnt(0)"),
          f"v_cmp_gt_u32 vcc, 32, v{vT+1}", f"s_sub_u32 s{s_t0}, s{s_t0}, 1", "s_cbranch_scc1 Lln_ok", "s_cbranch_vccnz Lln_spin", "Lln_ok:",
          swait(["w0"]), "s_barrier"] + stamp("lnok")
    p += flat(x_stage(0))
    p += [f"buffer_load_dword v{vT+1}, v{vL4}, {S4(sFL)}, s{s_fg} offen offset:32 sc1"]
    for s in range(1, 5): p += flat(x_stage(s))
    p += [f"s_lshl_b32 s{s_t0}, s{s_h}, 19"] + srd_off(sK, pK, 0, 524288, offs=s_t0) + srd_off(sV, pV, 0, 524288, offs=s_t0)
    p += [f"s_getreg_b32 s{s_t2}, hwreg(HW_REG_XCC_ID, 0, 4)", f"v_cmp_ne_u32 vcc, s{s_t2}, v{vT+1}", "s_nop 0", "s_cmp_lg_u64 vcc, 0", f"s_cselect_b32 s{s_same}, 1, 0"]
    if "forceslow" in OPT: p += [f"s_mov_b32 s{s_same}, 1"]
    return L(p)

def setup2():
    p = srd_off(sAF, pWS, AF_OFF, AF_SZ) + srd_off(sPT, pWS, PT_OFF, PT_SZ)
    p += [f"s_mul_i32 s{s_t0}, s{s_j}, {576*1152}"] + srd_off(sW2, pW2, 0, 576 * 1152, offs=s_t0)
    a, b = vT, vT + 1
    p += [f"s_lshl_b32 s{s_t0}, s{s_rb}, 14", f"s_add_u32 s{s_t0}, s{s_t0}, s{s_w4k}", f"v_lshl_add_u32 v{vX}, v1, 4, s{s_t0}"]
    p += [f"v_lshrrev_b32 v{a}, 2, v1", f"v_mul_u32_u24 v{a}, 288, v{a}", f"v_and_b32 v{b}, 3, v1",
          f"v_lshl_add_u32 v{vAq+1}, v{b}, 4, v{a}", f"v_add_u32 v{vAq}, {STG[0]}, v{vAq+1}",
          f"v_lshl_add_u32 v{vCa}, v{b}, 3, v{a}", f"v_add_u32 v{vCa+1}, {6*9216}, v{vCa}", f"v_add_u32 v{vCa+2}, {12*9216}, v{vCa}",
          f"s_and_b32 s{s_t0}, s{s_h}, 1", f"s_cmp_eq_u32 s{s_t0}, 1",
          f"s_mov_b32 s{s_t1}, 9216", f"s_cselect_b32 s{s_t1}, {9216+32}, s{s_t1}", f"s_mov_b32 s{s_hs}, {9216+256}", f"s_cselect_b32 s{s_hs}, 9216, s{s_hs}",
          f"v_add_u32 v{vAp+1}, s{s_t1}, v{vCa}", f"v_add_u32 v{vAs+1}, s{s_hs}, v{vCa}",
          f"v_add_u32 v{vAp}, {STG[0]}, v{vAp+1}", f"v_add_u32 v{vAs}, {STG[0]}, v{vAs+1}"]
    p += [f"s_mov_b32 s{s_t1}, {4*131072}", f"s_cselect_b32 s{s_t1}, {8-131072}, s{s_t1}",
          f"s_mul_i32 s{s_hf}, s{s_h}, 9", f"s_add_u32 s{s_hf}, s{s_hf}, s{s_t0}", f"s_lshr_b32 s{s_hf}, s{s_hf}, 1",
          f"s_mul_i32 s{s_own}, s{s_j}, 18", f"s_sub_u32 s{s_own}, s{s_hf}, s{s_own}",
          f"s_lshl_b32 s{s_hf}, s{s_hf}, 17", f"s_add_u32 s{s_hs}, s{s_hf}, s{s_t1}"]
    p += [f"v_lshrrev_b32 v{a}, 4, v1", f"v_and_b32 v{b}, 15, v1",
          f"v_xor_b32 v{vT+2}, v{a}, v{b}", f"v_lshlrev_b32 v{vT+2}, 4, v{vT+2}",
          f"v_lshl_add_u32 v{vT+3}, v{a}, 8, v{vT+2}", f"v_add_u32 v{vKd}, s{s_w4k}, v{vT+3}"]
    for t in range(1, 4): p.append(f"v_xor_b32 v{vKd+t}, {64*t}, v{vKd}")
    p += [f"v_lshl_add_u32 v{vT+3}, v{b}, 8, v{vT+2}", f"v_add_u32 v{vKa}, {KB}, v{vT+3}"]
    for j in range(1, 4): p.append(f"v_xor_b32 v{vKa+j}, {64*j}, v{vKa}")
    p += [f"v_lshlrev_b32 v{vT+2}, 1, v{a}", f"v_xor_b32 v{vT+2}, v{vT+2}, v{b}", f"v_lshlrev_b32 v{vT+2}, 4, v{vT+2}",
          f"v_lshl_add_u32 v{vT+2}, v{a}, 8, v{vT+2}", f"v_add_u32 v{vVd}, s{s_w4k}, v{vT+2}", f"v_xor_b32 v{vVd+1}, 128, v{vVd}"]
    p += [f"v_lshrrev_b32 v{a}, 2, v1", f"v_and_b32 v{b}, 7, v{a}", f"v_lshlrev_b32 v{a}, 8, v{a}", f"v_lshl_add_u32 v{a}, v{b}, 5, v{a}",
          f"v_and_b32 v{b}, 3, v1", f"v_lshl_add_u32 v{a}, v{b}, 3, v{a}", f"v_add_u32 v{a}, {VB}, v{a}", f"v_xor_b32 v{vVa+7}, {32*7}, v{a}"]
    p += [f"s_mul_i32 s{s_t0}, s{s_cb}, 288"]
    for t in range(9):
        p += piece_off(vD + t, [f"v_add_u32 v{vT}, {64*t}, v1"], 1152, None, perm=False) + [f"v_add_u32 v{vD+t}, s{s_t0}, v{vD+t}"]
    p += [f"s_lshr_b32 s{s_t0}, s2, 3", f"s_lshl_b32 s{s_t0}, s{s_t0}, 3",
          f"s_lshl1_add_u32 s{s_t1}, s{s_w}, s{s_t0}", f"s_lshl3_add_u32 s{s_t1}, s{s_t1}, s{s_j}", f"s_mul_i32 s{s_t1}, s{s_t1}, 9216",
          f"v_lshl_add_u32 v{vPw}, v1, 4, s{s_t1}",
          f"s_add_u32 s{s_t0}, s{s_t0}, s{s_j}", f"s_mul_i32 s{s_t0}, s{s_t0}, 73728", f"v_lshl_add_u32 v{vPr}, v0, 4, s{s_t0}",
          f"s_cmp_eq_u32 s{s_w}, 0", f"s_mov_b32 s{s_t1}, {OOB}", f"s_cselect_b32 s{s_t1}, 8192, s{s_t1}",
          f"v_add_u32 v{vPr+1}, 4096, v{vPr}", f"v_add_u32 v{vPr+2}, s{s_t1}, v{vPr}"]
    p += [f"s_mul_i32 s{s_m}, s{s_w}, 9216", f"s_mov_b32 s{s_rerun}, 0", f"s_mov_b32 s{s_wm}, 0",
          f"v_and_b32 v{vL4}, 3, v1", f"v_lshlrev_b32 v{vL4}, 2, v{vL4}"]
    return p

def kv_loads(kind, i, soff):
    o = []
    base = KB + kphys(i) * 16384 if kind == "K" else VB + (i % 4) * 16384
    tag = ("w", [(base, base + 16384)], f"{kind}{i}")
    for t in range(4):
        va = vKd + t if kind == "K" else vVd + (t & 1)
        pre = [f"s_add_u32 m0, s{s_w4k}, {base}"] if t == 0 else []
        o.append((pre, I(f"buffer_load_dwordx4 v{va}, {S4(sK if kind == 'K' else sV)}, {soff} offen offset:{1024*t} lds", tag=tag)))
    return o

def tr2(blk, va, off, tag):
    return [I(f"ds_read_b64_tr_b16 {vr(blk,2)}, v{va} offset:{off}", tag=tag), I(f"ds_read_b64_tr_b16 {vr(blk+2,2)}, v{va} offset:{off+4608}", tag=tag)]
def a_reads(f, s, t):
    sl = s % 6; hi = 0 if sl < 4 else 1
    rel = STG[sl] - (STG[0] if sl < 4 else 0)
    if t < 8: va, off = vAp, 32 * t
    elif t == 8: va, off = vAs, 0
    else: n = t - 9; va, off = vAq, 64 * (n // 2) + 8 * (n % 2)
    return tr2(AF + 4 * (f % 6), va + hi, rel + off, ("r", [(STG[sl], STG[sl] + 18432)], f"w{s}"))
def img_reads(f, slot, nt, content):
    return tr2(AF + 4 * (f % 6), vCa + slot // 6, (slot % 6) * 9216 + nt * 32, ("r", [(slot * 9216, slot * 9216 + 9216)], content))

def img_loads(first, srd_, slots, content, step=False):
    tag = ("w", [(s * 9216, s * 9216 + 9216) for s in slots], content)
    o = [(first, None)]
    for t in range(9):
        if step: pre = [f"s_mov_b32 m0, s{s_m8}"] if t == 0 else [f"s_add_u32 m0, m0, s{s_step}"]
        else: pre = [f"s_add_u32 m0, s{s_m8}, {t*1024}"]
        o.append((pre, I(f"buffer_load_dwordx4 v{vD+t}, {S4(srd_)}, s{s_cw} offen lds", tag=tag)))
    return o
def c_wloads(T):
    f = [f"s_add_u32 s{s_cw}, s{s_own}, s{s_w}"]
    if T: f += [f"s_add_u32 s{s_cw}, s{s_cw}, {4*T}", f"s_cmp_ge_u32 s{s_cw}, 18", f"s_cselect_b32 s{s_m8}, 18, 0", f"s_sub_u32 s{s_cw}, s{s_cw}, s{s_m8}"]
    f += [f"s_mul_i32 s{s_cw}, s{s_cw}, 36864"]
    if T < 3: f += [f"s_add_u32 s{s_m8}, s{s_m}, {cimg(4*T)*9216}"]
    elif T == 3: f += [f"s_sub_u32 s{s_m8}, s{s_m}, 9216", f"s_cmp_eq_u32 s{s_w}, 0", f"s_cselect_b32 s{s_m8}, {16*9216}, s{s_m8}"]
    else:
        f += [f"s_mov_b32 s{s_m8}, {cimg(17)*9216}", f"s_cmp_eq_u32 s{s_w}, 0", f"s_cselect_b32 s{s_m8}, {cimg(16)*9216}, s{s_m8}",
              f"s_cmp_ge_u32 s{s_w}, 2", f"s_cselect_b32 s{s_m8}, {DUMMY}, s{s_m8}", f"s_cselect_b32 s{s_cw}, {OOB}, s{s_cw}",
              f"s_cmp_ge_u32 s{s_w}, 2", f"s_cselect_b32 s{s_step}, 0, 1024"]
    return img_loads(f, sW2, [cimg(t) for t in range(4 * T, min(4 * T + 4, 18))], f"cw{T}", step=(T == 4))
def d_wloads(T):
    f = [f"s_add_u32 s{s_cw}, s{s_cb}, {T}", f"s_and_b32 s{s_cw}, s{s_cw}, 3", f"s_lshl2_add_u32 s{s_cw}, s{s_cw}, s{s_w}", f"s_mul_i32 s{s_cw}, s{s_cw}, 36864",
         f"s_add_u32 s{s_m8}, s{s_m}, {4*T*9216}"]
    return img_loads(f, sWO, list(range(4 * T, 4 * T + 4)), f"dw{T}")

def bfrag(tab, p, ks, qt):
    f, b = tab[p][ks]
    return (vr if f == "v" else ar)(b + 4 * qt, 4)
def A2(b): return [("a", b), ("a", b + 16)]
OWN = {0: [("v", HB[0]), ("v", HB[1])], 1: [("v", HB[2]), ("v", HB[3])]}
CB = dict(OWN); CB.update({2: A2(144), 3: A2(176), 4: A2(208), 5: A2(0), 6: A2(32), 7: A2(64), 8: A2(96)})
DB = dict(OWN); DB.update({2: A2(0), 3: A2(32), 4: A2(64), 5: A2(96), 6: OWN[0], 7: OWN[1]})
def b_ld(tab, p, ks, pre):
    return [(pre if qt == 0 else [], I(f"buffer_load_dwordx4 {bfrag(tab, p, ks, qt)}, v{vX}, {S4(sAF)}, s{s_bo} offen offset:{1024*qt} sc1")) for qt in range(4)]
def c_bloads(p):
    o = []
    for ks in range(2):
        t = 2 * p + ks
        pre = [f"s_add_u32 s{s_bo}, s{s_own}, {t}", f"s_cmp_ge_u32 s{s_bo}, 18", f"s_cselect_b32 s{s_t1}, 18, 0", f"s_sub_u32 s{s_bo}, s{s_bo}, s{s_t1}",
               f"s_mul_i32 s{s_t1}, s{s_j}, 18", f"s_add_u32 s{s_bo}, s{s_bo}, s{s_t1}", f"s_lshl_b32 s{s_bo}, s{s_bo}, 17"]
        o += b_ld(CB, p, ks, pre)
    return o
def d_bloads(p):
    o = []
    for ks in range(2):
        u = 2 * p + ks
        if u % 4 == 0:
            pre = [f"s_add_u32 s{s_bo}, s{s_cb}, {u//4}", f"s_and_b32 s{s_bo}, s{s_bo}, 3", f"s_lshl2_add_u32 s{s_bo}, s{s_j}, s{s_bo}",
                   f"s_lshl_b32 s{s_bo}, s{s_bo}, 19", f"s_add_u32 s{s_bo}, s{s_bo}, {144*131072}"]
        else: pre = [f"s_add_u32 s{s_bo}, s{s_bo}, 131072"]
        o += b_ld(DB, p, ks, pre)
    return o

def part_epi(acc, nt, which, e, chain, tmp):
    o = []
    for qp in range(2):
        if acc[0] == "v":
            b = acc[1] + 8 * qp; src = [b + i for i in range(8)]
        else:
            src = [tmp[0] + i for i in range(4)] + [tmp[1] + i for i in range(4)]; b = tmp[0]
            for i in (4, 5, 6, 7, 0, 1, 2, 3): o.append(It(f"v_accvgpr_read_b32 v{src[i]}, a{acc[1] + 8*qp + i}", e, chain=chain))
        for i in range(4): o.append(It(f"v_cvt_pk_bf16_f32 v{b+i}, v{src[2*i]}, v{src[2*i+1]}", e, chain=chain))
        o += chain_items([([f"s_mov_b32 s{s_t2}, {which*PT_HALF + qp*73728 + (nt//4)*4096}"],
                           I(f"buffer_store_dwordx4 {vr(b,4)}, v{vPw}, {S4(sPT)}, s{s_t2} offen offset:{(nt%4)*1024} sc1"))], e, 10**9, chain)
    return o
def pace(items, g0, g1):
    for k, it in enumerate(items): it.d = g0 + ((g1 - g0) * (k + 1)) // len(items)
    return items
def accr(a, qt): return (vr if a[0] == "v" else ar)(a[1] + 4 * qt, 4)

CACC = [("v", FB[0]), ("a", 128)] + [("v", b) for b in FB[1:]]
def phaseAC():
    unitsA = [(s, t) for s in range(15) for t in range(17)] + [(s, t) for t in range(17) for s in (15, 16, 17)]
    unitsC = [(p, nt) for p in range(7) for nt in range(9)] + [(p, nt) for nt in range(9) for p in (7, 8)]
    mf = []; first = []; last = []; rds = []; need = []
    for f, (s, t) in enumerate(unitsA):
        first.append(len(mf))
        for qt in range(4):
            acc = vr(HACC + 16 * t + 4 * qt, 4) if t < 9 else ar(QACC + 16 * (t - 9) + 4 * qt, 4)
            mf.append(f"{M16} {acc}, {vr(AF + 4*(f%6), 4)}, {ar(XR + 16*(s%6) + 4*qt, 4)}, {acc if s else 0}")
        last.append(len(mf) - 1); rds.append(a_reads(f, s, t)); need.append(f"w{s}")
    nA = len(mf); f = len(unitsA)
    ux = {}
    for (p, nt) in unitsC:
        ux[(p, nt)] = len(mf)
        for ks in range(2):
            first.append(len(mf) + ks); last.append(len(mf) + 6 + ks)
            rds.append(img_reads(f + ks, cimg(2 * p + ks), nt, f"cw{p//2}")); need.append(f"cw{p//2}")
        for qt in range(4):
            acc = accr(CACC[nt], qt)
            for ks in range(2):
                mf.append(f"{M16} {acc}, {vr(AF + 4*((f+ks)%6), 4)}, {bfrag(CB, p, ks, qt)}, {0 if (p == 0 and ks == 0) else acc}")
        f += 2
    n = len(mf)
    G = lambda p, nt=0: ux[(p, nt)]
    fixed = {}; tailins = {}; items = []; vis = {"w0": -1}
    def add(g, x): fixed.setdefault(g, []).extend(x if isinstance(x, list) else [x])
    def barrier(g, names, w=None):
        add(g - 1, w if w else swait(names)); add(g, "s_barrier")
        for nm in names: vis[nm] = g
    vm = []
    def vq(lst, e, d0, d1=None, after=None):
        its = chain_items(lst, e, d0, "vm", after)
        if d1 is not None:
            pace(its, d0, d1)
            for k, it in enumerate(its): it.e = max(e, it.d - 8)
        vm.extend(its)
    junk = lambda srd_, so: I(f"buffer_load_dwordx4 {vr(vJunkA,4)}, v{vWarmA}, {S4(srd_)}, {so} offen")
    B = {}
    for s in range(15):
        g = 68 * (s + 1) - 17; B[s] = g
        barrier(g, [f"w{s+1}"] if s < 14 else ["w15", "w16", "w17", "cw0"])
        if s + 5 < 18:
            ex = []
            if 2 <= s < 8:
                j_ = junk(sW2, f"s{s_wm}"); j_.wr = set()
                ex = [([], j_), ([f"s_add_u32 s{s_wm}, s{s_wm}, 131072"], None)]
            vq(w_stage(s + 5) + x_stage(s + 5) + ex, g + 1, g, g + 62)
        elif s == 13: vq(c_wloads(0), g - 2, g, g + 40)
    W0 = 68 * 15
    he = []
    for fq in range(5):
        e = W0 + 12 * min(2 * fq + 2, 9) + 3
        if 0 < fq < 4: he.append(It([f"s_add_u32 s{s_hf}, s{s_hf}, 131072"], e, chain="he"))
        for qt in range(4):
            a_ = HACC + 32 * fq + 4 * qt; b_ = a_ + 16
            src = [a_, a_ + 2, b_, b_ + 2][:4 if fq < 4 else 2]
            for i, r in enumerate(src): he.append(It(f"v_cvt_pk_bf16_f32 v{a_+i}, v{r}, v{r+1}", e, chain="he"))
            for i in range(len(src)): he.append(It(f"v_pk_max_i16 v{a_+i}, v{a_+i}, 0", e, chain="he"))
            if fq < 4: he.append(It(f"buffer_store_dwordx4 {vr(a_,4)}, v{vX}, {S4(sAF)}, s{s_hf} offen offset:{1024*qt}", e, chain="he"))
            else: he.append(It(f"buffer_store_dwordx2 {vr(a_,2)}, v{vX}, {S4(sAF)}, s{s_hs} offen offset:{1024*qt}", e, chain="he"))
    for it in he: it.d = it.e + 30
    vq(c_wloads(1), B[14] + 1, B[14], B[14] + 45)
    items.append(It(f"v_mov_b32 v{vVa}, 1", W0, W0 + 20))
    items += chain_items([([f"s_lshl2_add_u32 s{s_at}, s{s_cb}, s{s_fg}"] + [f"s_mul_i32 s{s_t0}, s{s_j}, {512*1152}"] + srd_off(sWO, pWO, 0, 512 * 1152, offs=s_t0)
                           + srd_off(sX2, pX, 0, 2048 * 1152) + srd_off(sOUT, pOUT, 0, 2048 * 1152) + [f"s_mov_b32 s{s_wm}, 0"], None)], W0 + 60, W0 + 190, "sc")
    BE = nA + 2
    barrier(BE, ["cw1"], "s_waitcnt vmcnt(0)")
    tailins[BE] = release("h")
    vq([([], I(f"buffer_store_dword v{vVa}, v{vZ0}, {S4(sFL)}, s{s_at} offen sc1"))], BE + 1, BE + 1)
    w2_ = c_wloads(2)
    vq(w2_[:6], BE + 2, BE + 4, BE + 36)
    ld, chk = poll("h", vL4, sFL, f"s{s_fg}", 0, 1, vVa + 1, acquire=True)
    vq([([], ld)], BE + 38, BE + 38)
    gc = BE + 68
    vq(w2_[6:], BE + 40, BE + 42, gc - 2)
    tailins[gc] = chk
    qe = []; drained = {}
    for j in range(4):
        e = G(j // 2 + 1) + 1
        for qt in range(4):
            d = HB[j] + 4 * qt
            src = [QACC + 32 * j + 4 * qt + i for i in range(4)] + [QACC + 32 * j + 16 + 4 * qt + i for i in range(4)]
            for i in range(4):
                r2 = d + i + 1 if i < 3 else vVa + 2
                qe += [It(f"v_accvgpr_read_b32 v{d+i}, a{src[2*i]}", e, chain="qe"), It(f"v_accvgpr_read_b32 v{r2}, a{src[2*i+1]}", e, chain="qe"),
                       It(f"v_cvt_pk_bf16_f32 v{d+i}, v{d+i}, v{r2}", e, chain="qe")]
        drained[j] = qe[-1]
    pace(qe, G(1), G(4, 6))
    for d in range(7): qe.append(It(f"v_xor_b32 v{vVa+d}, {32*(d^7)}, v{vVa+7}", gc + 1, G(6), chain="qe"))
    barrier(G(4) - 17, ["cw2"]); Bx = G(4, 3); barrier(Bx, [], "s_nop 0"); barrier(G(6) - 17, ["cw3"]); barrier(G(7) - 17, ["cw4"])
    vq(c_bloads(2), gc + 1, gc, gc + 40)
    vq(c_bloads(3), 0, gc + 42, G(2, 2))
    vq(c_bloads(4), 0, G(2, 2), G(2, 8))
    vq(c_wloads(3), 0, G(2, 8), G(3, 5))
    vq(c_bloads(5), 0, G(3, 5), G(4, 1), drained[0])
    vq([([f"s_mov_b32 s{s_ko}, 0"], None)] + kv_loads("K", 0, f"s{s_ko}"), G(4) - 16, G(4, 1), G(4, 4))
    vq(c_bloads(6), 0, G(4, 4), G(5, 0), drained[1])
    vq(c_wloads(4), Bx + 1, G(5, 0), G(5, 6))
    vq(c_bloads(7), 0, G(5, 6), G(6, 1), drained[2])
    vq(c_bloads(8), 0, G(6, 1), G(6, 5), drained[3])
    vq(kv_loads("V", 0, f"s{s_ko}") + [([f"s_mov_b32 s{s_ko}, 16384"], None)] + kv_loads("K", 1, f"s{s_ko}"), 0, G(6, 6), G(7, 3))
    ge = []
    for nt in range(9):
        x = part_epi(CACC[nt], nt, 0, G(8, nt) + 8 + 3, "ge", (FB[0] + 4, FB[0] + 12))
        for it in x: it.d = it.e + 24
        ge += x
    pre = []
    for f in range(len(rds)):
        if f < 4: pre += rds[f]; continue
        e = max(last[f - 6] + 1 if f >= 6 else 0, vis[need[f]] + 1)
        for r in rds[f]: items.append(It(r, e, first[f] - 7, chain="rd"))
    items += vm + he + qe + ge
    if STAMP:
        tailins[W0 - 1] = stamp("Awin"); tailins[nA - 1] = stamp("C0")
        if STAMP > 1:
            for p_ in range(1, 8): tailins[G(p_) - 1] = stamp(f"c{p_}")
    body, left = sched(mf, items, fixed, tailins, vspace=3, name="AC")
    return L(stamp("A0") + pre), body, L(["s_nop 7"]) + left

def k_read(sub, kt, j):
    i, hk = sub // 2, sub % 2; b = KB + kphys(i) * 16384
    return I(f"ds_read_b128 {ar(KF + 16*kt + 4*j, 4)}, v{vKa+j} offset:{kphys(i)*16384 + hk*8192 + kt*4096}", tag=("r" if sub < 64 else "z", [(b, b + 16384)], f"K{i}"))
def v_reads(sub, dt):
    i, hv = sub // 2, sub % 2
    off = (i % 4) * 16384 + hv * 8192; b = VB + (i % 4) * 16384
    tag = ("r", [(b, b + 16384)], f"V{i}")
    return [I(f"ds_read_b64_tr_b16 {ar(VF + 4*dt, 2)}, v{vVa+dt} offset:{off}", tag=tag),
            I(f"ds_read_b64_tr_b16 {ar(VF + 4*dt + 2, 2)}, v{vVa+dt} offset:{off+4096}", tag=tag)]
ADDQ = (0, 2)
def lreg_add(qt): return LA + qt // 2
def lreg_m(qt): return LM + 4 * (qt // 2)
def sreg(sub, kt, qt): return SBK[sub % 2][kt] + 4 * qt
def qk_chain(sub, kt, qt, czero=False):
    d = sreg(sub, kt, qt)
    return [f"{M16} {vr(d,4)}, {ar(KF + 16*kt + 4*j, 4)}, {vr(HB[j] + 4*qt, 4)}, {(('0' if czero else vr(MR + 4*qt, 4)) if j == 0 else vr(d, 4))}" for j in range(4)]

def att_phase(u, do_qk=True, do_pv=True, do_sm=True, xdma=(), head=None):
    mf = []; qk_end = {}; pv_start = {}; pv_end = {}; qk_start = {}
    pb_r = PB[(u - 1) % 2]
    for g in range(8):
        if do_qk:
            qk_start[g] = len(mf); mf += qk_chain(u + 1, g // 4, g % 4); qk_end[g] = len(mf) - 1
        if do_pv:
            pv_start[g] = len(mf)
            for qt in range(4):
                o = ar(32 * qt + 4 * g, 4)
                mf.append(f"{M16} {o}, {ar(VF + 4*g, 4)}, {vr(pb_r + 4*qt, 4)}, {0 if u == 1 else o}")
            pv_end[g] = len(mf) - 1
            if g % 4 == 3:
                qt = 1 if g == 3 else 3
                l = vr(lreg_m(qt), 4)
                mf.append(f"{M16} {l}, {vr(ONES,4)}, {vr(pb_r + 4*qt, 4)}, {0 if u == 1 else l}")
    n = len(mf)
    full = do_qk and do_pv and do_sm
    half = n // 2
    if full:
        hp = "EOEOEOODEEOEOEOEOEOODEEOEOEOEOEEO"
        hx = "EOEOEOODEEOEOEOEOEOODEEOEOEODEEEO"
        pat = (hx if xdma else hp) + hp
    else: pat = None
    exps = []
    pb_w = PB[u % 2]
    order = [(qt, kt, i) for qt in range(4) for kt in range(2) for i in range(4)]
    if do_sm:
        for e, (qt, kt, i) in enumerate(order):
            r = sreg(u, kt, qt) + i
            exps.append(f"v_exp_f32 v{r}, v{r}")
    bar_gap = half - 3
    even = (u % 2 == 0)
    mem = []
    if do_qk:
        for j in range(4): mem.append((0, qk_start[4] - 8 + j, k_read(u + 1, 1, j)))
    if do_pv:
        for dt in range(4, 8):
            for x in v_reads(u - 1, dt): mem.append((0, pv_start[dt] - 8, x))
    e2 = max(bar_gap + 1, (qk_end[3] + 1) if do_qk else 0)
    if u + 2 <= 64:
        for j in range(4): mem.append((e2, n - 8 + j, k_read(u + 2, 0, j)))
    if 0 <= u <= 63:
        for dt in range(4):
            for x in v_reads(u, dt): mem.append((max(e2, (pv_end[dt] + 1) if do_pv else 0), n - 4 + 8 * dt, x))
    dq = []
    if 0 <= u <= 62:
        i = u // 2
        if even:
            if u > 0: dq += [(0, x) for x in kv_loads("V", i + 1, f"s{s_vo}")[2:]]
            dq += [(bar_gap + 1, x) for x in kv_loads("K", i + 3, f"s{s_ko}")[:2]]
        else:
            dq += [(0, x) for x in kv_loads("K", i + 3, f"s{s_ko}")[2:]] + [(0, x) for x in xdma] + [(0, x) for x in kv_loads("V", i + 2, f"s{s_vo}")[:2]]
    else: dq += [(2, x) for x in xdma]
    gaps = [[] for _ in range(n)]
    if head: gaps[0] += head[0]; gaps[1] += head[1]
    if even and 0 <= u <= 62:
        i = u // 2
        gaps[bar_gap - 1].append(swait([f"K{i+1}", f"V{i}"]))
        gaps[bar_gap].append("s_barrier")
        gaps[bar_gap - 2].append(f"s_add_u32 s{s_ko}, s{s_ko}, 16384")
        gaps[bar_gap + 2].append(f"s_add_u32 s{s_vo}, s{s_vo}, 16384")
    if pat is None:
        ne = len(exps)
        epos = [(k * (n - 2)) // ne for k in range(ne)] if ne else []
        cap = lambda g: 4
        dpos = list(range(3, n, 4))
        if len(dq) > 4: dpos = [3 + (k * (n - 3)) // len(dq) for k in range(len(dq))]
        ogaps = list(range(n))
    else:
        epos = [g for g in range(n) if pat[g] == "E"]
        dpos = [g for g in range(n) if pat[g] == "D"]
        ogaps = [g for g in range(n) if pat[g] == "O"]
        cap = lambda g: 2
    val = []
    if do_sm:
        for e, (qt, kt, i) in enumerate(order):
            r = sreg(u, kt, qt) + i
            if qt in ADDQ: val.append((epos[e] + 1, n + 5, f"v_add_f32 v{lreg_add(qt)}, v{lreg_add(qt)}, v{r}"))
            if i & 1: val.append((epos[e] + 1, epos[e] + 12, f"v_cvt_pk_bf16_f32 v{pb_w + 4*qt + 2*kt + i//2}, v{r-1}, v{r}"))
    post = {}
    for g in dpos:
        if dq and dq[0][0] <= g - 1:
            _, (pre, ins) = dq.pop(0)
            if any(is_vmem(mk(x)) for x in gaps[g - 1]): post.setdefault(g - 1, []).extend(pre)
            else: gaps[g - 1] += pre
            gaps[g].append(ins)
    assert not dq, (u, dq)
    todo = [(a_, b_, k, x) for k, (a_, b_, x) in enumerate(mem + val)]
    for g in ogaps:
        c = cap(g)
        cand = sorted([t for t in todo if t[0] <= g], key=lambda t: (t[1], t[2]))
        pick = []
        ms = [t for t in cand if isinstance(t[3], I)]; vs = [t for t in cand if not isinstance(t[3], I)]
        while len(pick) < c and (ms or vs):
            if ms and (not vs or len([q for q in pick if isinstance(q[3], I)]) <= len([q for q in pick if not isinstance(q[3], I)])): pick.append(ms.pop(0))
            else: pick.append(vs.pop(0))
        for t in pick:
            todo.remove(t); gaps[g].append(t[3])
            if t[1] < g and full: print(f"  warn: phase {u} late item at gap {g} (deadline {t[1]}): {t[3]}", file=sys.stderr)
    if todo:
        if full: print(f"  warn: phase {u} leftover {len(todo)}", file=sys.stderr)
        for t in sorted(todo, key=lambda t: t[2]): gaps[n - 1].append(t[3])
    og = [order_gap(g) for g in gaps]
    for e, g in enumerate(epos): og[g].append(mk(exps[e]))
    for g, x in post.items(): og[g] += L(x)
    return weave(mf, og)

def merge_pre(lst):
    o = []; acc = []
    for pre, ins in lst:
        if ins is None: acc += pre
        else: o.append((acc + pre, ins)); acc = []
    assert not acc
    return o

def att_start():
    p = [f"v_mov_b32 v{MFL+i}, 0xff800000" for i in range(4)]
    p += ["Latt:", swait(["K0"]), "s_barrier"] + stamp("att0")
    for kt in range(2):
        for j in range(4): p.append(k_read(0, kt, j))
    p += [f"s_mov_b32 s{s_ko}, 32768", f"s_mov_b32 s{s_vo}, 16384", f"s_mov_b32 s{s_cnt}, 8"]
    p += [f"v_mov_b32 v{vU}, {FLAG}", f"v_mov_b32 v{vU+1}, 0", f"ds_write_b32 v{vU}, v{vU+1}"]
    z = [f"v_mov_b32 v{ONES+i}, 0x3f803f80" for i in range(4)]
    z += [f"v_mov_b32 v{LA}, 0", f"v_mov_b32 v{LA+1}, 0", f"v_mov_b32 v{vOne}, 1", f"s_lshr_b32 s{s_t0}, s2, 3", f"s_lshl_b32 s{s_t0}, s{s_t0}, 12",
          f"v_lshl_add_u32 v{vWarm}, v0, 4, s{s_t0}", f"v_and_b32 v{vU+2}, 7, v0", f"v_lshlrev_b32 v{vU+2}, 2, v{vU+2}", f"s_lshl2_add_u32 s{s_hf}, s{s_j}, s{s_ft}"]
    p += z
    mf = []
    for kt in range(2):
        for qt in range(4): mf += qk_chain(0, kt, qt, czero=True)
    gaps = [[] for _ in range(32)]
    for j in range(4): gaps[18 + 4 * j - (j > 2)].append(k_read(1, 0, j))
    dq = kv_loads("V", 1, f"s{s_vo}") + kv_loads("K", 2, f"s{s_ko}")
    for k, (pre, ins) in enumerate(dq): gaps[4 * k] += pre; gaps[4 * k + 1].append(ins)
    p += weave(mf, [order_gap(g) for g in gaps])
    p += ["s_nop 2"]
    for qt in range(4):
        a_, b_ = sreg(0, 0, qt), sreg(0, 1, qt); m = MR + 4 * qt
        p += [f"v_max3_f32 v{m}, v{a_}, v{a_+1}, v{MFL+qt}", f"v_max3_f32 v{m+1}, v{a_+2}, v{a_+3}, v{b_}",
              f"v_max3_f32 v{m}, v{m}, v{b_+1}, v{b_+2}", f"v_max3_f32 v{m}, v{m}, v{m+1}, v{b_+3}"]
    for sw in ("v_permlane32_swap_b32", "v_permlane16_swap_b32"):
        for qt in range(4): p.append(f"v_mov_b32 v{MR+4*qt+1}, v{MR+4*qt}")
        for qt in range(4): p.append(f"{sw} v{MR+4*qt}, v{MR+4*qt+1}")
        for qt in range(4): p.append(f"v_max_f32 v{MR+4*qt}, v{MR+4*qt}, v{MR+4*qt+1}")
    for qt in range(4):
        a_, b_ = sreg(0, 0, qt), sreg(0, 1, qt); m = MR + 4 * qt
        p += [f"v_sub_f32 v{m}, 0, v{m}"] + [f"v_mov_b32 v{m+i}, v{m}" for i in range(1, 4)]
        for r in [a_ + i for i in range(4)] + [b_ + i for i in range(4)]: p.append(f"v_add_f32 v{r}, v{r}, v{m}")
    p += ["s_nop 1"]
    return L(p)

GL = [128 + 4 * i for i in range(12)] + [208 + 4 * i for i in range(12)]
def p_loads(which, land):
    o = []
    for src in range(8):
        for m in range(3):
            o.append(([f"s_mov_b32 s{s_t0}, {which*PT_HALF + src*9216}"] if m == 0 else [],
                      I(f"buffer_load_dwordx4 {ar(land[3*src+m], 4)}, v{vPr+m}, {S4(sPT)}, s{s_t0} offen sc1")))
    return o

def att_tail():
    ld, chk = poll("g", vU + 2, sFL, f"s{s_ft}", 0, 1, vPoll)
    head = (["s_waitcnt vmcnt(0)"], ["s_barrier"])
    w1 = merge_pre(d_wloads(1))
    p63 = att_phase(63, do_qk=False, xdma=[([], ld)] + merge_pre(d_wloads(0)) + w1[:3], head=head)
    p64 = att_phase(64, do_qk=False, do_sm=False, xdma=w1[3:] + p_loads(0, GL)[:3])
    return p63 + chk + p64

def att_end():
    p = stamp("attend") + ["s_nop 7"]
    t = vU + 3
    for qt in ADDQ: p.append(f"v_mov_b32 v{RR+qt}, v{lreg_add(qt)}")
    for qt in (1, 3): p.append(f"v_mov_b32 v{RR+qt}, v{lreg_m(qt)}")
    for sw in ("v_permlane32_swap_b32", "v_permlane16_swap_b32"):
        for qt in ADDQ: p.append(f"v_mov_b32 v{t+qt}, v{RR+qt}")
        p.append("s_nop 0")
        for qt in ADDQ: p.append(f"{sw} v{RR+qt}, v{t+qt}")
        p.append("s_nop 0")
        for qt in ADDQ: p.append(f"v_add_f32 v{RR+qt}, v{RR+qt}, v{t+qt}")
    p += [f"v_add_f32 v{t}, v{RR}, v{RR+1}", f"v_add_f32 v{t+1}, v{RR+2}, v{RR+3}", f"v_add_f32 v{t}, v{t}, v{t+1}",
          f"v_mov_b32 v{t+1}, 0x4b800000", f"v_cmp_nlt_f32 vcc, v{t}, v{t+1}", "s_nop 0",
          f"s_and_saveexec_b64 s[{s_ex}:{s_ex+1}], vcc", "s_cbranch_execz Lnoflag", f"ds_write_b32 v{vU}, v{vOne}", "Lnoflag:", f"s_mov_b64 exec, s[{s_ex}:{s_ex+1}]"]
    p += [swait(["dw0"]), "s_waitcnt lgkmcnt(0)", "s_barrier", f"ds_read_b32 v{t}, v{vU}"]
    for qt in range(4): p.append(f"v_rcp_f32 v{RR+qt}, v{RR+qt}")
    p += [f"s_lshl_b32 s{s_bo}, s{s_h}, 19", f"s_add_u32 s{s_bo}, s{s_bo}, {144*131072}"]
    p += ["s_waitcnt lgkmcnt(0)", f"v_readfirstlane_b32 s{s_t1}, v{t}", "s_nop 1", f"s_andn2_b32 s{s_t1}, s{s_t1}, s{s_rerun}", "s_cbranch_scc1 Lfallback"]
    gl = p_loads(0, GL)[3:]
    k = 0
    for f in range(4):
        if f: p.append(f"s_add_u32 s{s_bo}, s{s_bo}, 131072")
        for qt in range(4):
            t0 = 64 + 8 * (k % 2); k += 1
            d = HB[f] + 4 * qt
            for i in range(8): p.append(f"v_accvgpr_read_b32 v{t0+i}, a{32*qt + 8*f + i}")
            for i in range(4): p.append(f"v_pk_mul_f32 {vr(t0+2*i,2)}, {vr(t0+2*i,2)}, {vr(RR + (qt & 2), 2)} op_sel:[0,{qt&1}] op_sel_hi:[1,{qt&1}]")
            for i in range(4): p.append(f"v_cvt_pk_bf16_f32 v{d+i}, v{t0+2*i}, v{t0+2*i+1}")
            p.append(f"buffer_store_dwordx4 {vr(d,4)}, v{vX}, {S4(sAF)}, s{s_bo} offen offset:{1024*qt}")
    return L(p), gl

DACC = [("v", FB[0]), ("a", 176), ("a", 192)] + [("v", b) for b in FB[1:7]]
SEL = 240; GS = [16, 20, 24, 28, 248, 252]; vF2, vOne2, vL8, vXo = 14, 15, 246, 10
XQ = [FB[1] + 4, FB[1] + 12, FB[2] + 4]
def sel_init():
    a, b = 246, 247
    return [f"v_mov_b32 v{SEL}, 0", f"v_mov_b32 v{SEL+1}, 0", f"v_mov_b32 v{SEL+4}, 0", f"v_mov_b32 v{SEL+5}, 0",
            f"v_bfe_u32 v{a}, v0, 2, 2", f"v_bfe_u32 v{b}, v0, 4, 2", f"v_cmp_eq_u32 vcc, v{a}, v{b}",
            f"v_and_b32 v{a}, 1, v0", f"v_lshlrev_b32 v{a}, 4, v{a}", f"v_mov_b32 v{b}, 0x3f80", f"v_lshlrev_b32 v{a}, v{a}, v{b}",
            f"v_cndmask_b32 v{a}, 0, v{a}, vcc", f"v_and_b32 v{b}, 2, v0", f"v_cmp_eq_u32 vcc, 0, v{b}", f"v_mov_b32 v{vOne2}, 1", f"v_mov_b32 v{vOne2}, 1",
            f"v_cndmask_b32 v{SEL+2}, 0, v{a}, vcc", f"v_cndmask_b32 v{SEL+3}, v{a}, 0, vcc",
            f"v_and_b32 v{vL8}, 7, v0", f"v_lshlrev_b32 v{vL8}, 2, v{vL8}"]
def summ(land, dst, m, srcs=range(8)):
    o = []
    for src in srcs:
        for hf in range(2):
            d = vr(dst[2 * m + hf], 4)
            o.append(f"{M16} {d}, {vr(SEL + (2 if hf == 0 else 0), 4)}, {ar(land[3*src+m], 4)}, {d if src else 0}")
    return o

def phaseD(gl):
    units = [(p, nt) for p in range(4) for nt in range(9)] + [(p, nt) for nt in range(9) for p in range(4, 8)]
    mf = []; first = []; last = []; rds = []; need = []; ux = {}
    f = 0
    for (p, nt) in units:
        if (p, nt) == (2, 0):
            gsum0 = len(mf)
            for m in range(3): mf += summ(GL, GS, m)
        ux[(p, nt)] = len(mf)
        for ks in range(2):
            first.append(len(mf) + ks); last.append(len(mf) + 6 + ks)
            rds.append(img_reads(f + ks, 2 * p + ks, nt, f"dw{p//2}")); need.append(f"dw{p//2}")
        for qt in range(4):
            acc = accr(DACC[nt], qt)
            for ks in range(2):
                mf.append(f"{M16} {acc}, {vr(AF + 4*((f+ks)%6), 4)}, {bfrag(DB, p, ks, qt)}, {0 if (p == 0 and ks == 0) else acc}")
        f += 2
    n = len(mf)
    G = lambda p, nt=0: ux[(p, nt)]
    fixed = {}; tailins = {}; items = []; vis = {"dw0": -1}
    def add(g, x): fixed.setdefault(g, []).extend(x if isinstance(x, list) else [x])
    def barrier(g, names, w=None):
        add(g - 1, w if w else swait(names)); add(g, "s_barrier")
        for nm in names: vis[nm] = g
    vm = []
    def vq(lst, e, d0, d1=None, after=None):
        its = chain_items(lst, e, d0, "vm", after)
        if d1 is not None:
            pace(its, d0, d1)
            for k, it in enumerate(its): it.e = max(e, it.d - 8)
        vm.extend(its)
    for y in sel_init(): items.append(It(y, 0, 20, chain="sel"))
    BO = 26
    barrier(BO, ["dw1"], "s_waitcnt vmcnt(0)")
    tailins[BO] = release("o")
    vq([([f"s_lshl2_add_u32 s{s_at}, s{s_cb}, s{s_fg}"], None)], 0, 4)
    vq([([], I(f"buffer_store_dword v{vOne2}, v{vZ0}, {S4(sFL)}, s{s_at} offen offset:16 sc1"))], BO + 1, BO + 1)
    vq(gl[:8], BO + 2, BO + 2, BO + 36)
    ld, chk = poll("o", vL4, sFL, f"s{s_fg}", 16, 1, vF2, acquire=True)
    vq([([], ld)], BO + 38, BO + 38)
    gc = BO + 70
    vq(gl[8:16], BO + 40, BO + 40, gc - 2)
    tailins[gc] = chk
    vq(gl[16:], gc + 1, gc, gc + 16)
    vq(d_bloads(2), gc + 1, gc + 16, gc + 52)
    vq(d_bloads(3), 0, gc + 52, G(2, 0))
    vq(d_wloads(2), 0, G(2, 0), G(2, 4))
    vq(d_bloads(4), 0, G(2, 4), G(2, 8)); vq(d_bloads(5), 0, G(2, 8), G(3, 2))
    vq(d_wloads(3), 0, G(3, 2), G(3, 5))
    lastw = vm[-1]
    vq(d_bloads(6), 0, G(3, 5), G(3, 8)); vq(d_bloads(7), 0, G(3, 8), G(4, 0) + 4)
    barrier(G(4) - 17, ["dw2"]); barrier(G(6) - 17, ["dw3"])
    sl = []
    T = [4, 5, 6, 7]
    regs_ = [GS[q] + i for q in range(6) for i in range(4)]
    for b in range(0, 24, 4):
        rs = regs_[b:b + 4]
        seq = [f"v_mul_f32 v{r}, {CINV_BITS}, v{r}" for r in rs] + [f"v_mul_f32 v{t}, 0xbfb8aa3b, v{r}" for r, t in zip(rs, T)]
        seq += [f"v_exp_f32 v{t}, v{t}" for t in T] + [f"v_add_f32 v{t}, 1.0, v{t}" for t in T] + [f"v_rcp_f32 v{t}, v{t}" for t in T]
        seq += [f"v_mul_f32 v{r}, v{r}, v{t}" for r, t in zip(rs, T)]
        sl += [It(y, G(2, 1), chain="sl", after=lastw) for y in seq]
    xa = chain_items([([f"s_lshl3_add_u32 s{s_ko}, s{s_rb}, s{s_j}", f"s_mul_i32 s{s_ko}, s{s_ko}, {32*1152}", f"s_mul_i32 s{s_vo}, s{s_cb}, 288", f"s_add_u32 s{s_ko}, s{s_ko}, s{s_vo}",
                        f"s_lshl_b32 s{s_vo}, s{s_w}, 5", f"s_add_u32 s{s_ko}, s{s_ko}, s{s_vo}", f"s_cmp_eq_u32 s{s_w}, 0", f"s_cselect_b32 s{s_vo}, 0, {OOB}",
                        f"s_mov_b32 s{s_cnt}, 18432"], None)], 0, 10**9, "sl", lastw)
    xa += [It(y, 0, chain="sl", after=lastw) for y in [f"v_and_b32 v8, 15, v0", f"v_mul_u32_u24 v8, 1152, v8", f"v_bfe_u32 v9, v0, 4, 2", f"v_lshl_add_u32 v8, v9, 3, v8",
                                                       f"v_add_u32 v{vXo}, s{s_ko}, v8", f"v_add_u32 v{vXo+1}, s{s_vo}, v{vXo}"]]
    xdone = xa[-1]
    pace(xa + sl, G(4, 0), G(4, 7))
    se = []
    for nt in range(9):
        x = part_epi(DACC[nt], nt, 1, G(7, nt) + 8 + 3, "se", (FB[0] + 4, FB[0] + 12))
        if nt == 4:
            for m in range(3):
                for hf in range(2):
                    x.append(It(f"buffer_load_dwordx2 {vr(XQ[m] + 2*hf, 2)}, v{vXo + (m == 2)}, {S4(sX2)}, {'s%d' % s_cnt if hf else 0} offen offset:{128*m}", x[0].e, chain="se", after=xdone))
        for it in x: it.d = it.e + 30
        se += x
    pre = []
    for f in range(len(rds)):
        if f < 4: pre += rds[f]; continue
        e = max(last[f - 6] + 1 if f >= 6 else 0, vis[need[f]] + 1)
        for r in rds[f]: items.append(It(r, e, first[f] - 7, chain="rd"))
    items += vm + xa + sl + se
    if STAMP > 1:
        for p_ in range(1, 5): tailins[G(p_) - 1] = stamp(f"d{p_}")
    body, left = sched(mf, items, fixed, tailins, vspace=3, name="D")
    return L(stamp("D0") + pre), body, L(["s_nop 7"]) + left

def final():
    p = stamp("Dend") + [f"s_lshl2_add_u32 s{s_at}, s{s_j}, s{s_ft}", "s_waitcnt vmcnt(0)", "s_barrier",
                         f"buffer_store_dword v{vOne2}, v{vZ0}, {S4(sFL)}, s{s_at} offen offset:32 sc1"] + stamp("flagS")
    ld, chk = poll("s", vL8, sFL, f"s{s_ft}", 32, 1, vF2)
    E = 112; SS = [144 + 4 * i for i in range(6)]
    p += [ld]
    for m in range(3):
        for i in range(4): p += [f"v_lshlrev_b32 v{E+8*m+2*i}, 16, v{XQ[m]+i}", f"v_and_b32 v{E+8*m+2*i+1}, 0xffff0000, v{XQ[m]+i}"]
    p += chk + stamp("polled")
    land = [4 * i for i in range(24)]
    p += flat(p_loads(1, land))
    for src in range(8):
        for m in range(3): p += summ(land, SS, m, [src])
    p += ["s_nop 3"]
    for m in range(3):
        for hf in range(2):
            b = E + 8 * m + 4 * hf
            for i in range(4): p.append(f"v_fmac_f32 v{b+i}, v{SS[2*m+hf]+i}, v{GS[2*m+hf]+i}")
            p += [f"v_cvt_pk_bf16_f32 v{b}, v{b}, v{b+1}", f"v_cvt_pk_bf16_f32 v{b+1}, v{b+2}, v{b+3}",
                  f"buffer_store_dwordx2 {vr(b,2)}, v{vXo + (m == 2)}, {S4(sOUT)}, {'s%d' % s_cnt if hf else 0} offen offset:{128*m}"]
    p += stamp_out(0, "end", pWS, dbgreg=pDBG) + ["Lend:", "s_endpgm"]
    return L(p)

def fallback():
    p = ["Lfallback:", f"s_mov_b32 s{s_rerun}, -1", f"s_mov_b32 s{s_ko}, 0", "s_waitcnt vmcnt(0)", "Lfb_loop:", "s_barrier"]
    for pre, ins in kv_loads("K", 0, f"s{s_ko}"): p += pre + ["s_nop 0", I(ins.text)]
    p += ["s_waitcnt vmcnt(0)", "s_barrier"]
    for sub in range(2):
        for kt in range(2):
            for j in range(4): p.append(I(k_read(sub, kt, j).text))
        p += ["s_waitcnt lgkmcnt(0)"]
        for kt in range(2):
            for qt in range(4): p += qk_chain(0, kt, qt, czero=True)
        p += ["s_nop 7"]
        for qt in range(4):
            a_, b_ = sreg(0, 0, qt), sreg(0, 1, qt); m = MFL + qt
            p += [f"v_max3_f32 v{m}, v{a_}, v{a_+1}, v{m}", f"v_max3_f32 v{m}, v{a_+2}, v{a_+3}, v{m}",
                  f"v_max3_f32 v{m}, v{b_}, v{b_+1}, v{m}", f"v_max3_f32 v{m}, v{b_+2}, v{b_+3}, v{m}"]
    p += [f"s_add_u32 s{s_ko}, s{s_ko}, 16384", f"s_cmp_lt_u32 s{s_ko}, 524288", "s_cbranch_scc1 Lfb_loop", "s_barrier"]
    for kind, i in (("K", 0), ("K", 1), ("V", 0)):
        p += [f"s_mov_b32 s{s_ko}, {i*16384}"]
        for pre, ins in kv_loads(kind, i, f"s{s_ko}"): p += pre + ["s_nop 0", I(ins.text)]
    p += ["s_waitcnt vmcnt(0)", "s_branch Latt"]
    return L(p)

def gen_main():
    apre, abody, aleft = phaseAC()
    segs = [("start", startup()), ("apre", apre), ("AC", abody), ("aleft", aleft), ("att0", att_start()),
            ("p0", att_phase(0, do_pv=False)), ("p1", att_phase(1))]
    base = len(segs)
    junk = vr(vJunk, 4)
    for u in range(2, 63):
        x = ()
        if u % 8 == 3: x = [([], I(f"buffer_load_dwordx4 {junk}, v{vWarm}, {S4(sWO)}, s{s_wm} offen", meta=("nodep",)))]
        if u % 8 == 7: x = [([], I(f"buffer_load_dwordx4 {junk}, v{vWarm}, {S4(sCODE)}, 0 offen", meta=("nodep",)))]
        if u % 8 == 5: x = [([f"s_add_u32 s{s_wm}, s{s_wm}, 131072"], I(f"buffer_store_dword v{vOne}, v{vZ0}, {S4(sFL)}, s{s_at} offen sc1"))]
        for _, ins in x:
            if ins.meta: ins.wr = set()
        segs.append((f"p{u}", att_phase(u, xdma=x)))
    segs.append(("tail", att_tail()))
    e, gl = att_end()
    segs.append(("end", e))
    dpre, dbody, dleft = phaseD(gl)
    segs += [("dpre", dpre), ("d", dbody), ("dleft", dleft), ("final", final())]
    out = finalize(segs, "main")
    T = lambda s: [c.text for c in s]
    ph = {u: out[base + u - 2] for u in range(2, 63)}
    for u in range(10, 63):
        ref = 10 + (u - 10) % 8
        assert T(ph[u]) == T(ph[ref]), f"phase {u} differs from {ref}"
    for u in range(2, 10):
        a_, b_ = T(ph[u]), T(ph[u + 8])
        if a_ != b_:
            d = [(x, y) for x, y in zip(a_, b_) if x != y]
            assert len(a_) == len(b_) and all(x.startswith("s_waitcnt vmcnt") and int(x[16:-1]) >= int(y[16:-1]) for x, y in d), (u, d)
    prog = []
    for k in range(base): prog += out[k]
    prog += stamp("loop") + L([".p2align 6", "Lloop:"])
    def free_gap(seg, lo):
        pos = [k for k, c in enumerate(seg) if c.kind == "mfma"]
        g = lo
        while gkey(seg[pos[g] + 1]) == 0: g += 1
        return g, pos[g]
    def ins_pair(seg, lo, a_, b_):
        g, q = free_gap(seg, lo); seg = seg[:q + 1] + L([a_]) + seg[q + 1:]
        g2, q2 = free_gap(seg, g + 1)
        assert not any(("scc", 0) in c.wr for c in seg[q + 2:q2 + 1])
        return seg[:q2 + 1] + L([b_]) + seg[q2 + 1:], q2 + 1
    for u in range(10, 18):
        s = ph[u]
        if u % 8 == 5:
            s, _ = ins_pair(s, 8, f"s_cmp_eq_u32 s{s_cnt}, 6", f"s_cselect_b32 s{s_at}, s{s_hf}, {OOB}")
        if u % 8 == 6:
            s, q = ins_pair(s, 60, f"s_sub_u32 s{s_cnt}, s{s_cnt}, 1", f"s_cmp_eq_u32 s{s_cnt}, 0")
            assert not any(("scc", 0) in c.wr for c in s[q + 1:])
            s = s + L(["s_cbranch_scc1 Ltail"])
        prog += s
    prog += L(["s_branch Lloop", "Ltail:"])
    for k in range(base + 61, len(out)): prog += out[k]
    fb = fallback() + SLOW
    pr = check_hazards(fb, "fb") + check_waits(fb, "fb")
    assert not pr, pr
    prog += fb + L(["Lcode_end:"])
    return prog

def main(path):
    a = A()
    ref = open("cdna_kernels/" + NAME + ".s.ref").read().splitlines()
    for l in ref:
        if l.startswith(";") and "@launch" not in l and "Override launch" not in l and "grid=ceil" not in l: a(l)
    a("; @launch grid=(256,1,1) block=(256,1,1) lds=163840")
    a('.amdgcn_target "amdgcn-amd-amdhsa--gfx950"')
    n = NAME + "_kernel"
    a(kernel_head(n))
    for c in gen_main(): a(c.text)
    a(kernel_desc(n, 512, 256))
    if STAMP: a("; STAMPS " + ",".join(map(str, gcommon.STN)))
    open(path, "w").write(a.text())

if __name__ == "__main__":
    main(sys.argv[1] if len(sys.argv) > 1 else "cdna_kernels/" + NAME + ".s")
```
